```python
import torch

def _softmax(x, axis=-1):
    return torch.softmax(x, dim=axis)
def _gelu(x):
    return torch.nn.functional.gelu(x, approximate="tanh")
def _silu(x):
    return torch.nn.functional.silu(x)
def _sigmoid(x):
    return torch.sigmoid(x)
def _layernorm(x, axis=-1, eps=1e-5):
    m = x.mean(dim=axis, keepdim=True)
    v = x.var(dim=axis, keepdim=True, unbiased=False)
    return (x - m) / torch.sqrt(v + eps)
def _scatter_add(tgt, idx, src, axis=0):
    return tgt.clone().index_add_(axis, idx, src)
def _segment_sum(src, seg, n):
    out = torch.zeros((n,) + src.shape[1:], dtype=src.dtype)
    return out.index_add_(0, seg, src)
def _pad(x, pw):
    flat = tuple(v for pair in reversed(pw) for v in pair)
    return torch.nn.functional.pad(x, flat)

kernel_name = 'recurrent_scan__gqa_block_cached__glu_gated_geglu__prompt'

def setup_inputs():

    _w = (lambda a: (lambda t: t.to(torch.bfloat16) if t.is_floating_point() else t)(torch.as_tensor(a)))
    def _A_setup():
        B, Sq, D = 1, 2048, 448
        Hq, Hkv, Sk, Dh = 16, 8, 2048, 256
        assert Hq % Hkv == 0, (Hq, Hkv)
        return {
            "x": _w((lambda *s: torch.randn(*s, dtype=torch.bfloat16) * 0.05)(B, Sq, D)),
            "k_cache": _w((lambda *s: torch.randn(*s, dtype=torch.bfloat16) * 3.2)(B, Hkv, Sk, Dh)),
            "v_cache": _w((lambda *s: torch.randn(*s, dtype=torch.bfloat16) * 3.2)(B, Hkv, Sk, Dh)),
            "wq": _w((lambda *s: torch.randn(*s, dtype=torch.bfloat16) * 3.2)(D, Hq * Dh) * (D ** -0.5)),
            "wo": _w((lambda *s: torch.randn(*s, dtype=torch.bfloat16) * 3.2)(Hq * Dh, D) * ((Hq * Dh) ** -0.5)),
        }
    _A_in = _A_setup()

    def _B_setup():
        B, S, Dm, Df = 1, 2048, 448, 1792
        return {
            "x": _w((lambda *s: torch.randn(*s, dtype=torch.bfloat16) * 0.05)(B, S, Dm)),
            "w_gate": _w((lambda *s: torch.randn(*s, dtype=torch.bfloat16) * 0.4)(Dm, Df) * (Dm ** -0.5)),
            "w_up": _w((lambda *s: torch.randn(*s, dtype=torch.bfloat16) * 0.4)(Dm, Df) * (Dm ** -0.5)),
            "w_down": _w((lambda *s: torch.randn(*s, dtype=torch.bfloat16) * 0.4)(Df, Dm) * (Df ** -0.5)),
        }
    _B_in = _B_setup()

    return {
        "A_x": _A_in["x"],
        "A_k_cache": _A_in["k_cache"],
        "A_v_cache": _A_in["v_cache"],
        "A_wq": _A_in["wq"],
        "A_wo": _A_in["wo"],
        "B_x": _B_in["x"],
        "B_w_gate": _B_in["w_gate"],
        "B_w_up": _B_in["w_up"],
        "B_w_down": _B_in["w_down"],
    }

def reference(A_x, A_k_cache, A_v_cache, A_wq, A_wo, B_x, B_w_gate, B_w_up, B_w_down):
    def _A_ref(x, k_cache, v_cache, wq, wo):
        B, Sq, D = x.shape
        Hq, Dh = 16, 256
        Hkv = k_cache.shape[1]
        rep = Hq // Hkv
        q = (lambda x, *d: x.permute(*d))((x @ wq).reshape(B, Sq, Hq, Dh), 0, 2, 1, 3)
        k = (lambda x, n, axis: torch.repeat_interleave(x, n, dim=axis))(k_cache, rep, axis=1)
        v = (lambda x, n, axis: torch.repeat_interleave(x, n, dim=axis))(v_cache, rep, axis=1)
        scores = torch.einsum("bhqd,bhkd->bhqk", q, k) * (Dh ** -0.5)
        p = _softmax(scores, axis=-1)
        o = torch.einsum("bhqk,bhkd->bhqd", p, v)
        return (lambda x, *d: x.permute(*d))(o, 0, 2, 1, 3).reshape(B, Sq, Hq * Dh) @ wo

    def _B_ref(x, w_gate, w_up, w_down):
        g = torch.einsum("bsd,df->bsf", x, w_gate)
        u = torch.einsum("bsd,df->bsf", x, w_up)
        h = _gelu(g) * u
        return torch.einsum("bsf,fd->bsd", h, w_down)

    x = A_x
    xn = _layernorm(x, axis=-1)
    s = _A_ref(xn, A_k_cache, A_v_cache, A_wq, A_wo)
    g = _silu(_B_ref(xn, B_w_gate, B_w_up, B_w_down))
    return x + s * g
```

```python
import re

TRANS = ("v_exp_f32", "v_log_f32", "v_rcp_f32", "v_rsq_f32", "v_sqrt_f32", "v_sin_f32", "v_cos_f32", "v_rcp_iflag_f32")
_reg_re = re.compile(r"^(-|\|)?(abs\()?([vas])(\d+|\[(\d+):(\d+)\])\)?\|?$")


def parse_reg(tok):
    tok = tok.strip()
    if tok in ("vcc", "exec", "m0", "scc", "vcc_lo", "vcc_hi"):
        return [("x", "vcc" if tok.startswith("vcc") else tok)]
    m = _reg_re.match(tok)
    if not m:
        return []
    f = m.group(3)
    if m.group(5) is not None:
        return [(f, i) for i in range(int(m.group(5)), int(m.group(6)) + 1)]
    return [(f, int(m.group(4)))]


class Ins:
    __slots__ = ("text", "op", "dst", "src", "kind", "passes", "srcC", "srcAB", "data", "lds_dma")

    def __init__(self, text):
        self.text = text
        t = text.split(";")[0].strip()
        parts = t.split(None, 1)
        op = parts[0]
        self.op = op
        rest = parts[1] if len(parts) > 1 else ""
        ops = [o.strip() for o in rest.split(",")] if rest else []
        mods = []
        if ops:
            sp = ops[-1].split()
            if sp:
                ops[-1] = sp[0]
                mods = sp[1:]
        self.dst, self.src = [], []
        self.srcC, self.srcAB, self.data = [], [], []
        self.passes = 0
        self.lds_dma = False
        R = parse_reg
        if op.startswith("v_mfma"):
            self.kind = "mfma"
            self.passes = 4 if "16x16x32" in op else 8
            self.dst = R(ops[0])
            self.srcAB = R(ops[1]) + R(ops[2])
            self.srcC = R(ops[3])
            self.src = self.srcAB + self.srcC
        elif op.startswith("v_"):
            self.kind = "trans" if op.replace("_e32", "").replace("_e64", "") in TRANS else "valu"
            if op.startswith("v_permlane") and "swap" in op:
                self.kind = "permlane"
                self.dst = R(ops[0]) + R(ops[1])
                self.src = R(ops[0]) + R(ops[1])
            elif op.startswith("v_cmpx"):
                raise ValueError("no cmpx")
            elif op.startswith(("v_add_co", "v_sub_co", "v_addc_co", "v_subb_co")):
                self.dst = R(ops[0]) + R(ops[1])
                for o in ops[2:]:
                    self.src += R(o)
            else:
                self.dst = R(ops[0])
                for o in ops[1:]:
                    self.src += R(o)
                if op.startswith(("v_fmac", "v_dot2c", "v_pk_fmac")):
                    self.src += self.dst
                if op.startswith("v_dot"):
                    self.kind = "dot"
                if "dpp" in op or any(m.startswith(("row_", "quad_perm", "wave_")) for m in mods):
                    self.kind = "dpp"
                if op.startswith("v_cndmask") and len(ops) == 3:
                    self.src += [("x", "vcc")]
        elif op.startswith("ds_"):
            self.kind = "ds"
            if op.startswith(("ds_read", "ds_bpermute", "ds_permute", "ds_swizzle")):
                self.dst = R(ops[0])
                for o in ops[1:]:
                    self.src += R(o)
            else:
                for o in ops:
                    self.src += R(o)
                for o in ops[1:]:
                    self.data += R(o)
        elif op.startswith(("buffer_", "global_")):
            self.kind = "vmem"
            allmods = mods
            if "lds" in allmods or "_lds_" in op:
                self.lds_dma = True
                for o in ops:
                    self.src += R(o)
                self.src += [("x", "m0")]
            elif "load" in op:
                self.dst = R(ops[0])
                for o in ops[1:]:
                    self.src += R(o)
            else:
                for o in ops:
                    self.src += R(o)
                self.data = R(ops[0]) if op.startswith("buffer_") else R(ops[1])
        elif op.startswith("s_"):
            self.kind = "salu"
            if op.startswith(("s_cmp", "s_bitcmp", "s_cbranch", "s_branch", "s_waitcnt", "s_barrier", "s_nop", "s_endpgm", "s_setprio", "s_sleep")):
                for o in ops:
                    self.src += R(o)
            else:
                if ops:
                    self.dst = R(ops[0])
                for o in ops[1:]:
                    self.src += R(o)
                if "saveexec" in op:
                    self.dst += [("x", "exec")]
        else:
            raise ValueError("unknown instruction: " + text)

    def states(self):
        if self.op == "s_nop":
            return int(self.text.split(";")[0].split()[1], 0) + 1
        return 1


VALUK = ("valu", "trans", "permlane", "dpp", "dot")


def required(prev, cur):
    need = 0
    pd = set(prev.dst)
    if prev.kind in VALUK:
        vd = {r for r in pd if r[0] in "va"}
        sd = {r for r in pd if r[0] in "sx"}
        if cur.kind == "mfma" and vd & set(cur.src):
            need = max(need, 2)
        if cur.kind in ("permlane", "dpp") and vd & set(cur.src):
            need = max(need, 2)
        if cur.op.startswith(("v_readfirstlane", "v_readlane")) and vd & set(cur.src):
            need = max(need, 1)
        if prev.kind == "trans" and cur.kind in VALUK + ("mfma",) and cur.kind != "trans" and vd & set(cur.src + cur.dst):
            need = max(need, 1)
        if prev.kind == "trans" and cur.kind in ("ds", "vmem") and vd & set(cur.src):
            need = max(need, 1)
        if prev.kind == "dot" and vd & set(cur.src + cur.dst):
            if not (cur.op == prev.op and not (vd & set(x for x in cur.src if x not in cur.dst))):
                need = max(need, 3)
        if sd:
            if cur.kind in VALUK and sd & set(cur.src):
                need = max(need, 2 if not cur.op.startswith(("v_readlane", "v_writelane")) else 4)
            if cur.kind == "vmem" and sd & set(cur.src):
                need = max(need, 5)
            if cur.kind == "salu" and sd & set(cur.src):
                need = max(need, 1)
            if ("x", "exec") in sd:
                need = max(need, 5)
    if prev.kind == "mfma":
        d = pd
        p = prev.passes
        raw = {2: 5, 4: 8, 8: 12, 16: 20}[p]
        if cur.kind == "mfma":
            if d & set(cur.srcAB):
                need = max(need, raw)
            if d & set(cur.srcC):
                if not (cur.srcC == prev.dst and cur.passes == prev.passes):
                    need = max(need, {2: 4, 4: 6, 8: 10, 16: 18}[p])
            elif d & set(cur.dst):
                need = max(need, {2: 4, 4: 6, 8: 10, 16: 18}[p])
        elif cur.kind in VALUK or cur.kind in ("ds", "vmem"):
            if d & (set(cur.src) | set(cur.dst)):
                need = max(need, raw)
        if cur.kind in VALUK and set(prev.srcC) & set(cur.dst):
            need = max(need, {2: 1, 4: 3, 8: 7, 16: 15}[p])
    if prev.kind == "salu" and ("x", "m0") in pd and (cur.lds_dma):
        need = max(need, 1)
    if prev.kind == "vmem" and len(prev.data) >= 3 and set(prev.data) & set(cur.dst):
        need = max(need, 2 if cur.kind in VALUK else 1)
    if prev.kind == "salu" and ("x", "exec") in pd and cur.kind == "mfma":
        need = max(need, 1)
    return need


class Asm:
    def __init__(self):
        self.items = []

    def __call__(self, text):
        for line in text.split("\n"):
            line = line.strip()
            if not line:
                continue
            if line.endswith(":") or line.startswith((".", ";")):
                self.items.append(line)
            else:
                self.items.append(Ins(line))

    def label(self, name):
        self.items.append(name + ":")

    def extend(self, other):
        self.items.extend(other.items)

    def padded(self, lookback=24):
        out = []
        hist = []
        pos = 0
        nn = 0
        for it in self.items:
            if isinstance(it, str):
                out.append(it)
                continue
            need_pad = 0
            for (p, ppos) in hist[-lookback:]:
                r = required(p, it)
                if r:
                    have = pos - ppos - p.states()
                    if have < r:
                        need_pad = max(need_pad, r - have)
            while need_pad > 0:
                k = min(need_pad, 16)
                n = Ins(f"s_nop {k-1}")
                out.append(n)
                hist.append((n, pos))
                pos += k
                need_pad -= k
                nn += 1
            out.append(it)
            hist.append((it, pos))
            pos += it.states()
        a = Asm()
        a.items = out
        a.nops_added = nn
        return a

    def text(self):
        return "\n".join(it if isinstance(it, str) else "    " + it.text for it in self.items) + "\n"


def seam_pad(body_items, lookback=24):
    ins = [i for i in body_items if not isinstance(i, str)]
    tail = ins[-lookback:]
    head = ins[:lookback]
    worst = 0
    tpos = []
    pos = 0
    for t in tail:
        tpos.append(pos)
        pos += t.states()
    end = pos
    hp = end
    for h in head:
        for t, tp in zip(tail, tpos):
            r = required(t, h)
            if r:
                have = hp - tp - t.states()
                worst = max(worst, r - have)
        hp += h.states()
    return worst


def kernel_header(name):
    return f".globl {name}\n.p2align 8\n.type {name},@function\n{name}:\n"


def kernel_desc(name, vgpr, accum, sgpr=102):
    return f""".p2align 6
.amdhsa_kernel {name}
  .amdhsa_next_free_vgpr {vgpr}
  .amdhsa_next_free_sgpr {sgpr}
  .amdhsa_accum_offset {accum}
  .amdhsa_group_segment_fixed_size 0
  .amdhsa_kernarg_size 96
  .amdhsa_user_sgpr_count 2
  .amdhsa_user_sgpr_kernarg_segment_ptr 1
  .amdhsa_system_sgpr_workgroup_id_x 1
  .amdhsa_float_denorm_mode_32 3
  .amdhsa_float_denorm_mode_16_64 3
.end_amdhsa_kernel
"""


STAMP_OFF = 240 << 20


def stamp(a, k, clk=False):
    a(f"{'s_memtime' if clk else 's_memrealtime'} s[{64+2*k}:{65+2*k}]")


def stamp_end(a, kidx, vt, swave):
    a(f"""
    s_waitcnt vmcnt(0) lgkmcnt(0)
    s_memrealtime s[78:79]
    s_load_dwordx2 s[88:89], s[0:1], 88
    s_lshl_b32 s92, s2, 2
    s_add_u32 s92, s92, s{swave}
    s_lshl_b32 s92, s92, 6
    s_add_u32 s92, s92, {STAMP_OFF + kidx * 262144}
    s_waitcnt lgkmcnt(0)
    s_mov_b32 s90, {256 << 20}
    s_mov_b32 s91, 0x00020000
    v_mov_b32 v{vt+16}, 0
    """)
    for i in range(16):
        a(f"v_mov_b32 v{vt+i}, s{64+i}")
    for i in range(4):
        a(f"buffer_store_dwordx4 v[{vt+4*i}:{vt+4*i+3}], v{vt+16}, s[88:91], s92 offen offset:{16*i}")
    a("s_waitcnt vmcnt(0)")
```

```python
from asmlib import *
from sched import Stream
from kb import ACT_RG_BYTES, ACT_BYTES

KA_GRID = 256
SLOT = 16544
GB = [0, 4128, 8320, 12448]
KA_LDS = 8 * SLOT
QWS_OFF = 32 << 20
MF = "v_mfma_f32_16x16x32_bf16"

vQ = 0
vS = 128
vP = 160
vC = 192
vF = 208
vL = 232
vTS = 236
vT = 240
vKa, vVa, vDm = 248, 249, 250
vX0, vX1, vX2, vX3, vX4 = 251, 252, 253, 254, 255
SEQ = [0, 1, 2, 3, 4, 5] * 2 + [0, 1, 2, 3, 4] * 4

SRD_K, SRD_V, SRD_WS = 12, 16, 20
sWv, sRG, sKH, sHD, sRB = 24, 25, 26, 27, 28
sT, sBase, sK0, sV0, sTmp, sLds, sCnt, sRet, sThr, sTV = 30, 31, 32, 33, 34, 35, 36, 37, 38, 39


def Q(qb, s): return vQ + (qb * 8 + s) * 4
def S(kb, qb): return vS + (kb * 4 + qb) * 4
def P(par, qb): return vP + (par * 4 + qb) * 4
def C(qb): return vC + qb * 4
def O(qb, db): return (qb * 16 + db) * 4
def r4(f, r): return f"{f}[{r}:{r+3}]"


class Cfg:
    LEAD = 16
    BARLEAD = 6
    YP, XP, DW, DWK = 4, 68, 32, 32
    DV0, DV1 = 1, 33
    DK0, DK1 = 62, 110
    pairwait = True
    no_dma = False
    no_sm = False
    no_bar = False
    dma_lin = 0


class Builder:
    def __init__(self, cfg):
        self.cfg = cfg
        self.st = Stream()
        self.free = {}
        self.used = {}
        self.fid = 0
        self.minread = 0

    def use(self, pos, u):
        import math
        g = math.ceil(pos)
        self.used[g] = self.used.get(g, 0) + u

    def add(self, pos, text, kind="x", fid=None, u=1):
        self.st.add(pos, text, kind, fid)
        self.use(pos, u)

    def frag(self, fc, reads, mfmas):
        st = self.st
        buf = SEQ[fc]
        fr = vF + 4 * buf
        fid = self.fid
        self.fid += 1
        u = st.pos()
        pos = max(u - self.cfg.LEAD, self.free.get(buf, -10**9), self.minread)
        for i, rd in enumerate(reads):
            self.add(min(pos + i, u), rd(fr), "ds", fid if i == len(reads) - 1 else ("part", fid))
        for i, m in enumerate(mfmas):
            need = ()
            if i == 0:
                if self.cfg.pairwait:
                    if fc % 2 == 0:
                        need = (fid, fid + 1)
                        self.use(u, 1)
                    else:
                        need = (fid,)
                else:
                    need = (fid,)
                    self.use(u, 1)
            st.mfma(m(fr), need)
        self.free[buf] = st.pos()

    def qk(self, kslot, fc0, cinit=True):
        for kb in range(2):
            for s in range(8):
                off = kslot * SLOT + 2048 * kb + 128 * s
                rd = [lambda fr, off=off: f"ds_read_b128 {r4('v', fr)}, v{vKa} offset:{off}"]
                ms = []
                for qb in range(4):
                    d = r4('v', S(kb, qb))
                    c = d if s else (r4('v', C(qb)) if cinit else "0")
                    ms.append(lambda fr, d=d, c=c, q=r4('v', Q(qb, s)): f"{MF} {d}, {r4('v', fr)}, {q}, {c}")
                self.frag(fc0 + kb * 8 + s, rd, ms)

    def pv(self, vslot, par, fc0):
        for db in range(16):
            off = vslot * SLOT + 128 * (db // 2) + 32 * (db % 2)
            rd = [lambda fr, off=off: f"ds_read_b64_tr_b16 v[{fr}:{fr+1}], v{vVa} offset:{off}",
                  lambda fr, off=off: f"ds_read_b64_tr_b16 v[{fr+2}:{fr+3}], v{vVa} offset:{off+2048}"]
            ms = []
            for qb in range(4):
                o = r4('a', O(qb, db))
                ms.append(lambda fr, o=o, p=r4('v', P(par, qb)): f"{MF} {o}, {r4('v', fr)}, {p}, {o}")
            self.frag(fc0 + db, rd, ms)

    def place(self, ops, start, end):
        g = start
        for text, u, minpos in ops:
            g = max(g, minpos)
            while self.used.get(g, 0) + u > 2 and g < end:
                g += 1
            self.add(g - 0.5, text, "x", None, u)
        return g


def softmax_ops(par, kb, qb, tset):
    t = [vT + 4 * tset + i for i in range(4)]
    s = S(kb, qb)
    p = P(par, qb) + 2 * kb
    ex = [(f"v_exp_f32 v{t[i]}, v{s+i}", 2) for i in range(4)]
    rest = [(f"v_cvt_pk_bf16_f32 v{p}, v{t[0]}, v{t[1]}", 1),
            (f"v_add_f32 v{t[0]}, v{t[0]}, v{t[1]}", 1),
            (f"v_cvt_pk_bf16_f32 v{p+1}, v{t[2]}, v{t[3]}", 1),
            (f"v_add_f32 v{t[2]}, v{t[2]}, v{t[3]}", 1)]
    if kb == 0:
        rest.append((f"v_add_f32 v{vTS+qb}, v{t[0]}, v{t[2]}", 1))
    else:
        rest.append((f"v_add_f32 v{t[0]}, v{t[0]}, v{t[2]}", 1))
        rest.append((f"v_add_f32 v{vTS+qb}, v{vTS+qb}, v{t[0]}", 1))
    return ex, rest


def softmax_serial(a, par):
    for kb in range(2):
        for qb in range(4):
            ex, rest = softmax_ops(par, kb, qb, qb % 2)
            for t, _ in ex + rest:
                a(t)


def rowmax(a, qb, t, u):
    s0, s1 = S(0, qb), S(1, qb)
    a(f"""
    v_max3_f32 v{t}, v{s0}, v{s0+1}, v{s0+2}
    v_max3_f32 v{t}, v{t}, v{s0+3}, v{s1}
    v_max3_f32 v{t}, v{t}, v{s1+1}, v{s1+2}
    v_max_f32 v{t}, v{t}, v{s1+3}
    v_mov_b32 v{u}, v{t}
    v_permlane32_swap_b32 v{t}, v{u}
    v_max_f32 v{t}, v{t}, v{u}
    v_mov_b32 v{u}, v{t}
    v_permlane16_swap_b32 v{t}, v{u}
    v_max_f32 v{t}, v{t}, v{u}
    """)


def dma_ops(kind, slot):
    st_, so, srd = (sT, sK0, SRD_K) if kind == "K" else (sTV, sV0, SRD_V)
    groups = []
    for gi in range(2):
        for t in range(4):
            txt = []
            if t == 0:
                txt.append(f"s_add_u32 m0, s{sLds}, {slot*SLOT + gi*4128 + (2*SLOT if kind == 'V' else 0)}")
                if gi:
                    txt.append(f"s_add_u32 s{so}, s{so}, 4096")
                else:
                    txt.append(f"s_add_u32 s{so}, s{st_}, s{sBase}")
            txt.append(f"buffer_load_dwordx4 v{vDm}, s[{srd}:{srd+3}], s{so} offen offset:{1024*t} lds")
            if gi == 0 and t == 1:
                txt.append(f"s_add_u32 s{st_}, s{st_}, 16384")
            if gi == 0 and t == 2:
                txt.append(f"s_and_b32 s{st_}, s{st_}, 0x7ffff")
            groups.append("\n".join(txt))
    return groups


def gen_attn_loop(a, name, cfg):
    B = Builder(cfg)
    st = B.st
    issued = ["K0", "K1", "V0"]

    def barrier(pos, need):
        n = 8 * (len(issued) - 1 - issued.index(need))
        B.add(pos - 0.2, f"s_waitcnt vmcnt({n})" + ("" if cfg.no_bar else "\ns_barrier"), "x", u=2)
        B.minread = pos - 0.1

    def dma(kind, tile, slot, p0, p1):
        issued.append(f"{kind}{tile}")
        g = dma_ops(kind, slot)
        for i, txt in enumerate(g):
            if cfg.no_dma:
                continue
            pos = p0 + (p1 - p0) * i // 8
            B.add(pos - 0.3, txt, "x", None, u=txt.count("\n") + 1)

    barrier(-0.5, "K0")
    B.qk(0, 16, cinit=False)
    end = st.pos()
    barrier(end, "K1")
    dma("K", 2, 0, end + 0.22, end + 0.22)
    ini = Asm()
    for qb in range(4):
        rowmax(ini, qb, vTS + qb, vT + qb)
    for qb in range(4):
        for r in range(4):
            ini(f"v_sub_f32 v{C(qb)+r}, 0, v{vTS+qb}")
        for kb in range(2):
            for r in range(4):
                ini(f"v_sub_f32 v{S(kb,qb)+r}, v{S(kb,qb)+r}, v{vTS+qb}")
        ini(f"v_mov_b32 v{vL+qb}, 0")
    softmax_serial(ini, 0)
    st.add(end - 0.05, "\n".join(i.text for i in ini.items))

    def iteration(j, ret=None):
        par = j % 2
        qk = j < 31
        base = st.pos()
        end = base + (128 if qk else 64)
        lops = [(f"v_add_f32 v{vL+qb}, v{vL+qb}, v{vTS+qb}", 1, base + 1) for qb in range(4)]
        if qk:
            B.qk(1 - par, 0)
            barrier(base + cfg.YP, f"V{j}")
            dma("V", j + 1, 1 - par, base + cfg.YP + 1, base + cfg.YP + 1 + cfg.DW)
        B.pv(par, par, 16 if qk else 0)
        assert st.pos() == end
        if j <= 29:
            barrier(base + cfg.XP, f"K{j+2}")
        elif j == 30:
            barrier(base + 110, f"V31")
        if j <= 28:
            dma("K", j + 3, 1 - par, base + cfg.XP + 1, base + cfg.XP + 1 + cfg.DWK)
        B.deferred.append((lops, base + 1, base + 30))
        if qk:
            ops = []
            gi = 0
            pend = []
            for kb in range(2):
                for qb in range(4):
                    ex, rest = softmax_ops(1 - par, kb, qb, gi % 2)
                    rdy = base + 32 * kb + 28 + qb + 4
                    seq = []
                    for i, e in enumerate(ex):
                        seq.append((e[0], e[1], rdy))
                        take = pend[:2]
                        pend = pend[2:]
                        seq += take
                    seq += pend
                    ops += seq
                    pend = [(t, u, rdy) for t, u in rest]
                    gi += 1
            ops += pend
            ops += [(f"v_max3_f32 v{vT}, v{vTS}, v{vTS+1}, v{vTS+2}", 1, 0),
                    (f"v_max_f32 v{vT}, v{vT}, v{vTS+3}", 1, 0),
                    (f"v_cmp_lt_f32 vcc, s{sThr}, v{vT}", 1, 0)]
            if cfg.no_sm:
                ops = ops[-3:]
            B.deferred.append((ops, base + 32, end - 1))
            st.add(end - 0.05, f"s_mov_b32 s{sRet}, {ret}\ns_cbranch_vccnz {name}_slow\n{name}_ret{ret}:")

    B.deferred = []
    if cfg.stamps:
        st.add(-0.6, "s_memrealtime s[66:67]")
        st.add(st.pos() - 0.011, "s_memrealtime s[68:69]\ns_memtime s[72:73]\ns_waitcnt lgkmcnt(0)")
    st.add(st.pos() - 0.01, "loop", "cut")
    st.add(st.pos() - 0.009, f"{name}_loop:")
    iteration(0, ret=0)
    iteration(1, ret=1)
    st.add(st.pos() - 0.02, f"s_sub_u32 s{sCnt}, s{sCnt}, 1\ns_cmp_lg_u32 s{sCnt}, 0\ns_cbranch_scc1 {name}_loop")
    st.add(st.pos() - 0.01, "loopend", "cut")
    if cfg.stamps:
        st.add(st.pos() - 0.009, "s_memrealtime s[70:71]\ns_memtime s[74:75]\ns_waitcnt lgkmcnt(0)")
    for i, t in enumerate(issued):
        issued[i] = t[0] + str(int(t[1:]) + 26)
    for j in range(28, 32):
        iteration(j, ret=j - 26)
    for ops, s0, s1 in B.deferred:
        last = B.place(ops, s0, s1)
    cuts, out = st.emit(a)
    n0, n1 = len(cuts["loop"][1]), len(cuts["loopend"][1])
    assert n0 == n1, (cuts["loop"][1], cuts["loopend"][1])
    return cuts


def gen_slow(a, name):
    a(f"{name}_slow:")
    a("s_nop 7")
    a("s_nop 7")
    D = vTS
    for qb in range(4):
        rowmax(a, qb, D + qb, vT + qb)
    for qb in range(4):
        a(f"v_max_f32 v{D+qb}, 0, v{D+qb}")
        a(f"v_sub_f32 v{vX0+qb}, 0, v{D+qb}")
        a(f"v_exp_f32 v{vX0+qb}, v{vX0+qb}")
    for qb in range(4):
        a(f"v_mul_f32 v{vL+qb}, v{vL+qb}, v{vX0+qb}")
        for r in range(4):
            a(f"v_sub_f32 v{C(qb)+r}, v{C(qb)+r}, v{D+qb}")
        for kb in range(2):
            for r in range(4):
                a(f"v_sub_f32 v{S(kb,qb)+r}, v{S(kb,qb)+r}, v{D+qb}")
        for i0 in range(0, 64, 8):
            for i in range(8):
                a(f"v_accvgpr_read_b32 v{vT+i}, a{64*qb+i0+i}")
            for i in range(8):
                a(f"v_mul_f32 v{vT+i}, v{vT+i}, v{vX0+qb}")
            for i in range(8):
                a(f"v_accvgpr_write_b32 a{64*qb+i0+i}, v{vT+i}")
    a(f"s_bitcmp1_b32 s{sRet}, 0")
    a(f"s_cbranch_scc1 {name}_slow0")
    softmax_serial(a, 1)
    a("s_nop 1")
    a(f"s_cmp_eq_u32 s{sRet}, 0")
    a(f"s_cbranch_scc1 {name}_ret0")
    a(f"s_cmp_eq_u32 s{sRet}, 2")
    a(f"s_cbranch_scc1 {name}_ret2")
    a(f"s_branch {name}_ret4")
    a(f"{name}_slow0:")
    softmax_serial(a, 0)
    a("s_nop 1")
    a(f"s_cmp_eq_u32 s{sRet}, 1")
    a(f"s_cbranch_scc1 {name}_ret1")
    a(f"s_branch {name}_ret3")


def gen_setup(a, name, cfg):
    a(f"""
    s_cmp_ge_u32 s2, {KA_GRID}
    s_cbranch_scc1 {name}_end
    s_load_dwordx2 s[4:5], s[0:1], 8
    s_load_dwordx2 s[6:7], s[0:1], 16
    s_load_dwordx2 s[8:9], s[0:1], 88
    v_lshrrev_b32 v{vX0}, 6, v0
    v_and_b32 v{vX4}, 63, v0
    s_and_b32 s10, s2, 7
    v_readfirstlane_b32 s{sWv}, v{vX0}
    s_lshr_b32 s11, s2, 3
    s_lshr_b32 s{sHD}, s11, 4
    s_lshl_b32 s3, s10, 1
    s_add_u32 s{sHD}, s{sHD}, s3
    s_and_b32 s{sRB}, s11, 15
    s_lshr_b32 s{sRG}, s{sWv}, 1
    s_and_b32 s{sKH}, s{sWv}, 1
    s_lshl_b32 s{sT}, s11, 14
    s_lshl_b32 s{sBase}, s{sKH}, 19
    s_lshl_b32 s3, s{sRG}, 13
    s_add_u32 s{sBase}, s{sBase}, s3
    s_mul_i32 s{sLds}, s{sKH}, {4*SLOT}
    s_mul_i32 s3, s{sRG}, 8320
    s_add_u32 s{sLds}, s{sLds}, s3
    s_mov_b32 s{sThr}, 0x5f800000
    s_mov_b32 s{sCnt}, 14
    s_lshl_b32 s10, s10, 20
    """)
    l = vX4
    a(f"""
    v_lshrrev_b32 v{vX0}, 3, v{l}
    v_lshlrev_b32 v{vX0}, 6, v{vX0}
    v_and_b32 v{vX1}, 3, v{l}
    v_lshl_add_u32 v{vX0}, v{vX1}, 4, v{vX0}
    v_bfe_u32 v{vX1}, v{l}, 2, 1
    v_lshl_add_u32 v{vDm}, v{vX1}, 9, v{vX0}
    """)
    a(f"""
    s_mul_i32 s3, s{sKH}, {4*SLOT}
    s_movk_i32 s11, 4128
    s_movk_i32 s29, 8320
    v_bfe_u32 v{vX0}, v{l}, 1, 1
    v_mul_lo_u32 v{vX0}, v{vX0}, s11
    v_bfe_u32 v{vX1}, v{l}, 2, 1
    v_mul_lo_u32 v{vX1}, v{vX1}, s29
    v_add_u32 v{vX0}, v{vX0}, v{vX1}
    v_bfe_u32 v{vX1}, v{l}, 3, 1
    v_lshl_add_u32 v{vX0}, v{vX1}, 10, v{vX0}
    v_and_b32 v{vX1}, 1, v{l}
    v_lshl_add_u32 v{vX0}, v{vX1}, 6, v{vX0}
    v_lshrrev_b32 v{vX1}, 4, v{l}
    v_lshl_add_u32 v{vX0}, v{vX1}, 4, v{vX0}
    v_add_u32 v{vKa}, s3, v{vX0}
    """)
    a(f"""
    v_bfe_u32 v{vX0}, v{l}, 3, 1
    v_mul_lo_u32 v{vX0}, v{vX0}, s11
    v_bfe_u32 v{vX1}, v{l}, 4, 1
    v_mul_lo_u32 v{vX1}, v{vX1}, s29
    v_add_u32 v{vX0}, v{vX0}, v{vX1}
    v_bfe_u32 v{vX1}, v{l}, 5, 1
    v_lshl_add_u32 v{vX0}, v{vX1}, 10, v{vX0}
    v_bfe_u32 v{vX1}, v{l}, 2, 1
    v_lshl_add_u32 v{vX0}, v{vX1}, 6, v{vX0}
    v_and_b32 v{vX1}, 3, v{l}
    v_lshl_add_u32 v{vX0}, v{vX1}, 3, v{vX0}
    s_add_u32 s3, s3, {2*SLOT}
    v_add_u32 v{vVa}, s3, v{vX0}
    s_waitcnt lgkmcnt(0)
    s_add_u32 s{SRD_K}, s4, s10
    s_addc_u32 s{SRD_K+1}, s5, 0
    s_mov_b32 s{SRD_K+2}, 0x100000
    s_mov_b32 s{SRD_K+3}, 0x00020000
    s_add_u32 s{SRD_V}, s6, s10
    s_addc_u32 s{SRD_V+1}, s7, 0
    s_mov_b32 s{SRD_V+2}, 0x100000
    s_mov_b32 s{SRD_V+3}, 0x00020000
    s_mov_b32 s{SRD_WS}, s8
    s_mov_b32 s{SRD_WS+1}, s9
    s_mov_b32 s{SRD_WS+2}, {64 << 20}
    s_mov_b32 s{SRD_WS+3}, 0x00020000
    """)


def gen_first_dma(a):
    a(f"s_mov_b32 s{sTV}, s{sT}")
    for kind, slot in (("K", 0), ("K", 1), ("V", 0)):
        for g in dma_ops(kind, slot):
            a(g)


def gen_epilogue(a, name):
    l = vX4
    T = vS
    for qb in range(4):
        u = vT + qb
        a(f"""
        v_mov_b32 v{u}, v{vL+qb}
        v_permlane32_swap_b32 v{vL+qb}, v{u}
        v_add_f32 v{vL+qb}, v{vL+qb}, v{u}
        v_mov_b32 v{u}, v{vL+qb}
        v_permlane16_swap_b32 v{vL+qb}, v{u}
        v_add_f32 v{vL+qb}, v{vL+qb}, v{u}
        """)
    a(f"""
    v_lshlrev_b32 v{vX0}, 4, v{l}
    s_lshl_b32 s3, s{sWv}, 15
    v_add_u32 v{vX1}, s3, v{vX0}
    s_xor_b32 s3, s3, 0x8000
    v_add_u32 v{vX2}, s3, v{vX0}
    s_waitcnt lgkmcnt(0)
    s_barrier
    """)
    a(f"""
    v_mov_b32 v{T}, v{C(2)}
    v_mov_b32 v{T+1}, v{vL+2}
    v_mov_b32 v{T+2}, v{C(3)}
    v_mov_b32 v{T+3}, v{vL+3}
    s_lshl_b32 s3, s{sWv}, 10
    s_add_u32 s3, s3, 131072
    v_add_u32 v{vX3}, s3, v{vX0}
    ds_write_b128 v{vX3}, v[{T}:{T+3}]
    s_xor_b32 s3, s3, 0x400
    v_add_u32 v{vX3}, s3, v{vX0}
    """)
    for i in range(32):
        a(f"ds_write_b128 v{vX1}, a[{128+4*i}:{128+4*i+3}] offset:{1024*i}")
    a(f"""
    s_waitcnt lgkmcnt(0)
    s_barrier
    ds_read_b128 v[{T}:{T+3}], v{vX3}
    """)
    R = 0
    for i in range(14):
        a(f"ds_read_b128 v[{R+4*i}:{R+4*i+3}], v{vX2} offset:{1024*i}")
    a("s_waitcnt lgkmcnt(14)")
    FA, FB = vT, vT + 2
    for qb in range(2):
        cB, lB = T + 2 * qb, T + 2 * qb + 1
        a(f"""
        v_min_f32 v{T+8}, v{C(qb)}, v{cB}
        v_sub_f32 v{FA+qb}, v{T+8}, v{C(qb)}
        v_sub_f32 v{FB+qb}, v{T+8}, v{cB}
        v_exp_f32 v{FA+qb}, v{FA+qb}
        v_exp_f32 v{FB+qb}, v{FB+qb}
        v_mul_f32 v{T+9}, v{FA+qb}, v{vL+qb}
        v_fma_f32 v{T+9}, v{FB+qb}, v{lB}, v{T+9}
        v_rcp_f32 v{T+9}, v{T+9}
        v_mul_f32 v{FA+qb}, v{FA+qb}, v{T+9}
        v_mul_f32 v{FB+qb}, v{FB+qb}, v{T+9}
        """)
    a(f"""
    s_lshl_b32 s3, s{sRB}, 1
    s_add_u32 s3, s3, s{sRG}
    s_mul_i32 s3, s3, {ACT_RG_BYTES}
    s_lshl_b32 s10, s{sHD}, 15
    s_add_u32 s3, s3, s10
    s_lshl_b32 s10, s{sKH}, 11
    s_add_u32 s3, s3, s10
    """)
    nread = 14
    W = vS + 16
    for qb in range(2):
        for sg in range(8):
            i0 = (qb * 16 + 2 * sg)
            a(f"s_waitcnt lgkmcnt({max(nread - (i0 + 2), 0)})")
            w = W + 16 * (sg % 2)
            for k in range(8):
                a(f"v_accvgpr_read_b32 v{w+k}, a{4*i0+k}")
            for k in range(8):
                a(f"v_mul_f32 v{R+4*i0+k}, v{FB+qb}, v{R+4*i0+k}")
            for k in range(8):
                a(f"v_fma_f32 v{w+k}, v{w+k}, v{FA+qb}, v{R+4*i0+k}")
            for k in range(4):
                a(f"v_cvt_pk_bf16_f32 v{w+8+k}, v{w+2*k}, v{w+2*k+1}")
            for _ in range(2):
                if nread < 32:
                    a(f"ds_read_b128 v[{R+4*nread}:{R+4*nread+3}], v{vX2} offset:{1024*nread}")
                    nread += 1
            a(f"s_add_u32 s10, s3, {4096*sg}")
            a(f"buffer_store_dwordx4 v[{w+8}:{w+11}], v{vX0}, s[{SRD_WS}:{SRD_WS+3}], s10 offen offset:{1024*qb}")


def gen_ka(name="ka_kernel", stampk=None, cfg=None):
    cfg = cfg or Cfg()
    a = Asm()
    gen_setup(a, name, cfg)
    cfg.stamps = stampk is not None
    if cfg.stamps:
        stamp(a, 0)
    a(f"""
    v_lshlrev_b32 v{vX0}, 4, v{vX4}
    s_lshl_b32 s3, s2, 16
    s_lshl_b32 s10, s{sRG}, 15
    s_add_u32 s3, s3, s10
    s_add_u32 s3, s3, {QWS_OFF}
    """)
    for qb in range(4):
        a(f"s_lshl_b32 s10, s{sKH}, 1\ns_add_u32 s10, s10, {qb}\ns_and_b32 s10, s10, 3\ns_lshl_b32 s10, s10, 13\ns_add_u32 s10, s10, s3")
        for h in range(2):
            if h:
                a("s_add_u32 s10, s10, 4096")
            for s in range(4):
                r = Q(qb, 4 * h + s)
                a(f"buffer_load_dwordx4 v[{r}:{r+3}], v{vX0}, s[{SRD_WS}:{SRD_WS+3}], s10 offen offset:{1024*s}")
    gen_first_dma(a)
    for i in range(256):
        a(f"v_accvgpr_write_b32 a{i}, 0")
    cuts = gen_attn_loop(a, name, cfg)
    if cfg.stamps:
        stamp(a, 6)
    gen_epilogue(a, name)
    if cfg.stamps:
        stamp_end(a, stampk, 128, sWv)
    a(f"s_endpgm")
    gen_slow(a, name)
    a(f"{name}_end:\ns_endpgm")
    p = a.padded()
    items = p.items
    i0 = items.index(f"{name}_loop:")
    i1 = max(i for i, it in enumerate(items) if not isinstance(it, str) and it.text.endswith(f"{name}_loop"))
    sp = seam_pad(items[i0:i1 + 1])
    assert sp <= 0, sp
    nn = sum(1 for it in items[i0:i1] if not isinstance(it, str) and it.op == "s_nop")
    print("loop instrs", sum(1 for it in items[i0:i1] if not isinstance(it, str)), "nops in loop", nn)
    return kernel_header(name) + p.text(), kernel_desc(name, 512, 256)


KA_LDS_TOTAL = max(KA_LDS, 131072 + 4096)

if __name__ == "__main__":
    t, d = gen_ka()
    open("ka.txt", "w").write(t)
```

```python
import math
from asmlib import *
from sched import Stream
from kb import ACT_RG_BYTES, ACT_BYTES

KA_GRID = 256
KA_LDS = 163840
SLOT = 16544
GB = [0, 4128, 8320, 12448]
KB = KA_LDS - 4 * SLOT
WB, WSL = 16384, 32928
WG_OFF, WU_OFF = 16544, 24736
MF = "v_mfma_f32_16x16x32_bf16"

vQ, vS, vP, vC, vF, vL, vTS, vT = 0, 128, 160, 192, 208, 232, 236, 240
vKa, vVa, vDm = 248, 249, 250
vX0, vX1, vX2, vX3, vX4 = 251, 252, 253, 254, 255
SEQ = [0, 1, 2, 3, 4, 5] * 2 + [0, 1, 2, 3, 4] * 4
pF = 144
pXP = 164
pXO = 180
pD = 204
pA, pC, pB = 212, 214, 216
pXW, pXR = 224, 225
pR, pNM = 226, 228
pT = 230
aX = 96

SRD_K, SRD_V, SRD_WS, SRD_W, SRD_X = 12, 16, 20, 40, 44
sWv, sRG, sKH, sHD, sRB = 24, 25, 26, 27, 28
sT, sBase, sK0, sV0, sTmp, sLds, sCnt, sRet, sThr, sTV = 30, 31, 32, 33, 34, 35, 36, 37, 38, 39
sMa, sMb, sKs, sWst, sWtot, sWcol, sW, sXk = 48, 49, 50, 51, 52, 53, 54, 55
sM0 = 56
sC = 80


def Q(qb, s): return vQ + (qb * 8 + s) * 4
def S(kb, qb): return vS + (kb * 4 + qb) * 4
def P(par, qb): return vP + (par * 4 + qb) * 4
def C(qb): return vC + qb * 4
def O(qb, db): return (qb * 16 + db) * 4
def r4(f, r): return f"{f}[{r}:{r+3}]"
def KSL(p): return (1 - p) * 2 * SLOT
def VSL(p): return p * 2 * SLOT


class Cfg:
    LEAD = 16
    YP, XP, DW, DWK = 4, 68, 32, 32
    YP0 = 44
    pairwait = True
    no_dma = False
    no_sm = False
    no_bar = False
    stamps = False
    PBAR = 4
    PDW = 40


def lanecalc(a, dst, l, terms, add=None, tmp=vX1, stmp=3):
    first = True
    for off, w, coef in terms:
        t = dst if first else tmp
        a(f"v_bfe_u32 v{t}, v{l}, {off}, {w}")
        if coef & (coef - 1) == 0:
            sh = coef.bit_length() - 1
            if first:
                if sh:
                    a(f"v_lshlrev_b32 v{dst}, {sh}, v{dst}")
            else:
                a(f"v_lshl_add_u32 v{dst}, v{t}, {sh}, v{dst}")
        else:
            a(f"s_mov_b32 s{stmp}, {coef}")
            if first:
                a(f"v_mul_u32_u24 v{dst}, s{stmp}, v{dst}")
            else:
                a(f"v_mad_u32_u24 v{dst}, v{t}, s{stmp}, v{dst}")
        first = False
    if add is not None:
        a(f"v_add_u32 v{dst}, {add}, v{dst}")


class Builder:
    def __init__(self, cfg, fbase, seq):
        self.cfg = cfg
        self.st = Stream()
        self.free = {}
        self.used = {}
        self.fid = 0
        self.minread = -10**9
        self.fbase = fbase
        self.seq = seq
        self.deferred = []

    def use(self, pos, u):
        g = math.ceil(pos)
        self.used[g] = self.used.get(g, 0) + u

    def add(self, pos, text, kind="x", fid=None, u=1):
        self.st.add(pos, text, kind, fid)
        self.use(pos, u)

    def frag(self, fc, reads, mfmas, extra_need=(), pair=None):
        st = self.st
        buf = self.seq[fc]
        fr = self.fbase + 4 * buf
        fid = self.fid
        self.fid += 1
        u = st.pos()
        pos = max(u - self.cfg.LEAD, self.free.get(buf, -10**9), self.minread)
        for i, rd in enumerate(reads):
            self.add(min(pos + i, u), rd(fr), "ds", fid if i == len(reads) - 1 else ("part", fid))
        if pair is None:
            pair = fc % 2 == 0
        for i, m in enumerate(mfmas):
            need = ()
            if i == 0:
                need = (fid,) + tuple(extra_need)
                if self.cfg.pairwait and pair:
                    need += (fid + 1,)
                if pair or not self.cfg.pairwait:
                    self.use(u, 1)
            st.mfma(m(fr), need)
        self.free[buf] = st.pos()

    def qk(self, kslot, fc0, cinit=True):
        for kb in range(2):
            for s in range(8):
                off = KSL(kslot) + 2048 * kb + 128 * s
                rd = [lambda fr, off=off: f"ds_read_b128 {r4('v', fr)}, v{vKa} offset:{off}"]
                ms = []
                for qb in range(4):
                    d = r4('v', S(kb, qb))
                    c = d if s else (r4('v', C(qb)) if cinit else "0")
                    ms.append(lambda fr, d=d, c=c, q=r4('v', Q(qb, s)): f"{MF} {d}, {r4('v', fr)}, {q}, {c}")
                self.frag(fc0 + kb * 8 + s, rd, ms)

    def pv(self, vslot, par, fc0, first=False):
        for db in range(16):
            off = VSL(vslot) + 128 * (db // 2) + 32 * (db % 2)
            rd = [lambda fr, off=off: f"ds_read_b64_tr_b16 v[{fr}:{fr+1}], v{vVa} offset:{off}",
                  lambda fr, off=off: f"ds_read_b64_tr_b16 v[{fr+2}:{fr+3}], v{vVa} offset:{off+2048}"]
            ms = []
            for qb in range(4):
                o = r4('a', O(qb, db))
                ms.append(lambda fr, o=o, p=r4('v', P(par, qb)): f"{MF} {o}, {r4('v', fr)}, {p}, {'0' if first else o}")
            self.frag(fc0 + db, rd, ms)

    def place(self, ops, start, end):
        g = start
        for op in ops:
            text, u, minpos = op[:3]
            kind, fid = op[3:] if len(op) > 3 else ("x", None)
            g = max(g, minpos)
            while self.used.get(g, 0) + u > 2 and g < end:
                g += 1
            self.add(g - 0.5, text, kind, fid, u)
        return g

    def finish(self, a):
        for ops, s0, s1 in self.deferred:
            self.place(ops, s0, s1)
        return self.st.emit(a)


def softmax_ops(par, kb, qb, tset):
    t = [vT + 4 * tset + i for i in range(4)]
    s = S(kb, qb)
    p = P(par, qb) + 2 * kb
    ex = [(f"v_exp_f32 v{t[i]}, v{s+i}", 2) for i in range(4)]
    rest = [(f"v_cvt_pk_bf16_f32 v{p}, v{t[0]}, v{t[1]}", 1),
            (f"v_add_f32 v{t[0]}, v{t[0]}, v{t[1]}", 1),
            (f"v_cvt_pk_bf16_f32 v{p+1}, v{t[2]}, v{t[3]}", 1),
            (f"v_add_f32 v{t[2]}, v{t[2]}, v{t[3]}", 1)]
    if kb == 0:
        rest.append((f"v_add_f32 v{vTS+qb}, v{t[0]}, v{t[2]}", 1))
    else:
        rest.append((f"v_add_f32 v{t[0]}, v{t[0]}, v{t[2]}", 1))
        rest.append((f"v_add_f32 v{vTS+qb}, v{vTS+qb}, v{t[0]}", 1))
    return ex, rest


def softmax_serial(a, par):
    for kb in range(2):
        for qb in range(4):
            ex, rest = softmax_ops(par, kb, qb, qb % 2)
            for t, _ in ex + rest:
                a(t)


def xreduce(a, op, t, u):
    a(f"""
    v_mov_b32 v{u}, v{t}
    v_permlane32_swap_b32 v{t}, v{u}
    {op} v{t}, v{t}, v{u}
    v_mov_b32 v{u}, v{t}
    v_permlane16_swap_b32 v{t}, v{u}
    {op} v{t}, v{t}, v{u}
    """)


def rowmax(a, qb, t, u):
    s0, s1 = S(0, qb), S(1, qb)
    a(f"""
    v_max3_f32 v{t}, v{s0}, v{s0+1}, v{s0+2}
    v_max3_f32 v{t}, v{t}, v{s0+3}, v{s1}
    v_max3_f32 v{t}, v{t}, v{s1+1}, v{s1+2}
    v_max_f32 v{t}, v{t}, v{s1+3}
    """)
    xreduce(a, "v_max_f32", t, u)


def dma_ops(kind, slot):
    st_, so, srd = (sT, sK0, SRD_K) if kind == "K" else (sTV, sV0, SRD_V)
    lb = KB + KSL(slot) if kind == "K" else VSL(slot)
    groups = []
    for gi in range(2):
        for t in range(4):
            txt = []
            if t == 0:
                txt.append(f"s_add_u32 m0, s{sLds}, {lb + gi*4128}")
                if gi:
                    txt.append(f"s_add_u32 s{so}, s{so}, 4096")
                else:
                    txt.append(f"s_add_u32 s{so}, s{st_}, s{sBase}")
            txt.append(f"buffer_load_dwordx4 v{vDm}, s[{srd}:{srd+3}], s{so} offen offset:{1024*t} lds")
            if gi == 0 and t == 1:
                txt.append(f"s_add_u32 s{st_}, s{st_}, 16384")
            if gi == 0 and t == 2:
                txt.append(f"s_and_b32 s{st_}, s{st_}, 0x7ffff")
            groups.append("\n".join(txt))
    return groups


def gen_attn(a, name, cfg):
    B = Builder(cfg, vF, SEQ)
    st = B.st
    issued = []

    def barrier(pos, need):
        w = ""
        if need is not None:
            n = 8 * (len(issued) - 1 - issued.index(need))
            w = f"s_waitcnt vmcnt({n})\n"
        B.add(pos - 0.2, w + ("s_nop 0" if cfg.no_bar else "s_barrier"), "x", u=2)
        B.minread = pos - 0.1

    def dma(kind, tile, slot, p0, p1):
        issued.append(f"{kind}{tile}")
        g = dma_ops(kind, slot)
        for i, txt in enumerate(g):
            if cfg.no_dma and tile > 2:
                continue
            pos = p0 + (p1 - p0) * i // 8
            B.add(pos - 0.3, txt, "x", None, u=txt.count("\n") + 1)

    B.minread = -0.5
    B.qk(0, 16, cinit=False)
    end = st.pos()
    barrier(6, None)
    dma("V", 0, 0, 7, 39)
    barrier(end, None)
    B.minread = -10**9
    dma("K", 2, 0, end + 0.22, end + 0.22)
    ini = Asm()
    for qb in range(4):
        rowmax(ini, qb, vTS + qb, vT + qb)
    for qb in range(4):
        for r in range(4):
            ini(f"v_sub_f32 v{C(qb)+r}, 0, v{vTS+qb}")
        for kb in range(2):
            for r in range(4):
                ini(f"v_sub_f32 v{S(kb,qb)+r}, v{S(kb,qb)+r}, v{vTS+qb}")
        ini(f"v_mov_b32 v{vL+qb}, 0")
    softmax_serial(ini, 0)
    st.add(end - 0.05, "\n".join(i.text for i in ini.items))

    def iteration(j, ret=None):
        par = j % 2
        qk = j < 31
        base = st.pos()
        end = base + (128 if qk else 64)
        lops = [(f"v_add_f32 v{vL+qb}, v{vL+qb}, v{vTS+qb}", 1, base + 1) for qb in range(4)]
        if qk:
            B.qk(1 - par, 0)
            barrier(base + cfg.YP, f"V{j}")
            dma("V", j + 1, 1 - par, base + cfg.YP + 1, base + cfg.YP + 1 + cfg.DW)
        B.pv(par, par, 16 if qk else 0, first=(j == 0))
        assert st.pos() == end
        if j <= 29:
            barrier(base + cfg.XP, f"K{j+2}")
        elif j == 30:
            barrier(base + 110, f"V31")
        if j <= 28:
            dma("K", j + 3, 1 - par, base + cfg.XP + 1, base + cfg.XP + 1 + cfg.DWK)
        B.deferred.append((lops, base + 1, base + 30))
        if qk:
            ops = []
            gi = 0
            pend = []
            for kb in range(2):
                for qb in range(4):
                    ex, rest = softmax_ops(1 - par, kb, qb, gi % 2)
                    rdy = base + 32 * kb + 28 + qb + 4
                    seq = []
                    for i, e in enumerate(ex):
                        seq.append((e[0], e[1], rdy))
                        take = pend[:2]
                        pend = pend[2:]
                        seq += take
                    seq += pend
                    ops += seq
                    pend = [(t, u, rdy) for t, u in rest]
                    gi += 1
            ops += pend
            ops += [(f"v_max3_f32 v{vT}, v{vTS}, v{vTS+1}, v{vTS+2}", 1, 0),
                    (f"v_max_f32 v{vT}, v{vT}, v{vTS+3}", 1, 0),
                    (f"v_cmp_lt_f32 vcc, s{sThr}, v{vT}", 1, 0)]
            if cfg.no_sm:
                ops = ops[-3:]
            B.deferred.append((ops, base + 32, end - 1))
            st.add(end - 0.05, f"s_mov_b32 s{sRet}, {ret}\ns_cbranch_vccnz {name}_slow\n{name}_ret{ret}:")

    iteration(0, ret=0)
    if cfg.stamps:
        st.add(st.pos() - 0.011, "s_memrealtime s[68:69]\ns_memtime s[72:73]\ns_waitcnt lgkmcnt(0)")
    st.add(st.pos() - 0.01, "loop", "cut")
    st.add(st.pos() - 0.009, f"{name}_loop:")
    iteration(1, ret=1)
    iteration(2, ret=2)
    st.add(st.pos() - 0.02, f"s_sub_u32 s{sCnt}, s{sCnt}, 1\ns_cmp_lg_u32 s{sCnt}, 0\ns_cbranch_scc1 {name}_loop")
    st.add(st.pos() - 0.01, "loopend", "cut")
    if cfg.stamps:
        st.add(st.pos() - 0.009, "s_memrealtime s[70:71]\ns_memtime s[74:75]\ns_waitcnt lgkmcnt(0)")
    for i, t in enumerate(issued):
        issued[i] = t[0] + str(int(t[1:]) + 26)
    for j in range(29, 32):
        iteration(j, ret=j - 26)
    cuts, out = B.finish(a)
    n0, n1 = len(cuts["loop"][1]), len(cuts["loopend"][1])
    assert n0 == n1, (cuts["loop"][1], cuts["loopend"][1])


def gen_slow(a, name):
    a(f"{name}_slow:")
    a("s_nop 7")
    a("s_nop 7")
    D = vTS
    for qb in range(4):
        rowmax(a, qb, D + qb, vT + qb)
    for qb in range(4):
        a(f"v_max_f32 v{D+qb}, 0, v{D+qb}")
        a(f"v_sub_f32 v{vX0+qb}, 0, v{D+qb}")
        a(f"v_exp_f32 v{vX0+qb}, v{vX0+qb}")
    for qb in range(4):
        a(f"v_mul_f32 v{vL+qb}, v{vL+qb}, v{vX0+qb}")
        for r in range(4):
            a(f"v_sub_f32 v{C(qb)+r}, v{C(qb)+r}, v{D+qb}")
        for kb in range(2):
            for r in range(4):
                a(f"v_sub_f32 v{S(kb,qb)+r}, v{S(kb,qb)+r}, v{D+qb}")
        for i0 in range(0, 64, 8):
            for i in range(8):
                a(f"v_accvgpr_read_b32 v{vT+i}, a{64*qb+i0+i}")
            for i in range(8):
                a(f"v_mul_f32 v{vT+i}, v{vT+i}, v{vX0+qb}")
            for i in range(8):
                a(f"v_accvgpr_write_b32 a{64*qb+i0+i}, v{vT+i}")
    a(f"s_bitcmp1_b32 s{sRet}, 0")
    a(f"s_cbranch_scc1 {name}_slow0")
    softmax_serial(a, 1)
    a("s_nop 1")
    a(f"s_cmp_eq_u32 s{sRet}, 0")
    a(f"s_cbranch_scc1 {name}_ret0")
    a(f"s_cmp_eq_u32 s{sRet}, 2")
    a(f"s_cbranch_scc1 {name}_ret2")
    a(f"s_branch {name}_ret4")
    a(f"{name}_slow0:")
    softmax_serial(a, 0)
    a("s_nop 1")
    a(f"s_cmp_eq_u32 s{sRet}, 1")
    a(f"s_cbranch_scc1 {name}_ret1")
    a(f"s_branch {name}_ret3")


def srd(a, r, lo, hi, nrec):
    a(f"s_mov_b32 s{r}, s{lo}\ns_mov_b32 s{r+1}, s{hi}\ns_mov_b32 s{r+2}, {nrec}\ns_mov_b32 s{r+3}, 0x00020000")


def gen_setup(a, name, cfg):
    l = vX4
    a(f"""
    s_cmp_ge_u32 s2, {KA_GRID}
    s_cbranch_scc1 {name}_end
    s_load_dwordx8 s[4:11], s[0:1], 0
    s_load_dwordx4 s[80:83], s[0:1], 48
    s_load_dwordx2 s[84:85], s[0:1], 88
    """)
    if cfg.stamps:
        stamp(a, 0)
    a(f"""
    v_lshrrev_b32 v{vX0}, 6, v0
    v_and_b32 v{l}, 63, v0
    s_and_b32 s29, s2, 7
    v_readfirstlane_b32 s{sWv}, v{vX0}
    s_lshr_b32 s{sT}, s2, 3
    s_lshr_b32 s{sHD}, s{sT}, 4
    s_lshl_b32 s3, s29, 1
    s_add_u32 s{sHD}, s{sHD}, s3
    s_and_b32 s{sRB}, s{sT}, 15
    s_lshr_b32 s{sRG}, s{sWv}, 1
    s_and_b32 s{sKH}, s{sWv}, 1
    s_lshl_b32 s{sT}, s{sT}, 14
    s_mov_b32 s{sTV}, s{sT}
    s_lshl_b32 s{sBase}, s{sKH}, 19
    s_lshl_b32 s3, s{sRG}, 13
    s_add_u32 s{sBase}, s{sBase}, s3
    s_mul_i32 s{sLds}, s{sKH}, {SLOT}
    s_mul_i32 s3, s{sRG}, 8320
    s_add_u32 s{sLds}, s{sLds}, s3
    s_mov_b32 s{sThr}, 0x5f800000
    s_mov_b32 s{sCnt}, 14
    s_lshl_b32 s29, s29, 20
    s_sub_u32 s{sXk}, s{sRB}, 14
    s_cmp_ge_u32 s{sRB}, 14
    s_cselect_b32 s{sXk}, s{sXk}, s{sRB}
    """)
    a(f"""
    s_lshl_b32 s3, s{sRB}, 7
    s_lshl_b32 s{sTmp}, s{sWv}, 5
    s_add_u32 s{sTmp}, s{sTmp}, s3
    s_mul_i32 s{sTmp}, s{sTmp}, 896
    """)
    lanecalc(a, pT, l, [(0, 4, 896), (4, 2, 16)], add=f"s{sTmp}")
    a(f"v_add_u32 v{pT+1}, {16*896}, v{pT}")
    a(f"""
    s_lshl_b32 s{sTmp}, s{sXk}, 6
    s_waitcnt lgkmcnt(0)
    """)
    srd(a, SRD_X, 4, 5, 2048 * 896)
    for i in range(14):
        for qb in range(2):
            r = aX + (qb * 14 + i) * 4
            a(f"buffer_load_dwordx4 a[{r}:{r+3}], v{pT+qb}, s[{SRD_X}:{SRD_X+3}], s{sTmp} offen")
        if i < 13:
            a(f"""
            s_add_u32 s{sTmp}, s{sTmp}, 64
            s_cmp_eq_u32 s{sTmp}, 896
            s_cselect_b32 s{sTmp}, 0, s{sTmp}
            """)
    a(f"""
    s_cmp_ge_u32 s{sWv}, 2
    s_cbranch_scc1 {name}_wmlp
    """)
    srd(a, SRD_W, 10, 11, 448 * 8192)
    a(f"""
    s_mul_i32 s{sMa}, s{sWv}, 8320
    s_add_u32 s{sMb}, s{sMa}, 4128
    s_mov_b32 s{sWst}, {32*8192}
    s_mov_b32 s{sWtot}, {14*32*8192}
    s_lshl_b32 s{sWcol}, s{sHD}, 9
    s_lshl_b32 s3, s{sWv}, 16
    s_add_u32 s{sWcol}, s{sWcol}, s3
    """)
    lanecalc(a, pD, l, [(2, 1, 8192), (3, 3, 64), (0, 2, 16)])
    for i in range(1, 8):
        gi, t = i // 4, i % 4
        a(f"v_add_u32 v{pD+i}, {(16*(t//2) + 4*(t%2) + 2*gi)*8192 - 1024*t}, v{pD}")
    a(f"""
    s_branch {name}_wdone
    {name}_wmlp:
    s_cmp_eq_u32 s{sWv}, 2
    s_cselect_b32 s{SRD_W}, s80, s82
    s_cselect_b32 s{SRD_W+1}, s81, s83
    s_mov_b32 s{SRD_W+2}, {448*3584}
    s_mov_b32 s{SRD_W+3}, 0x00020000
    s_cselect_b32 s{sMa}, {WG_OFF}, s{sMa}
    s_cselect_b32 s{sMa}, s{sMa}, {WU_OFF}
    s_add_u32 s{sMb}, s{sMa}, 4096
    s_mov_b32 s{sWst}, {32*3584}
    s_mov_b32 s{sWtot}, {14*32*3584}
    s_mul_i32 s{sWcol}, s{sHD}, 224
    s_movk_i32 s86, 4682
    """)
    for i in range(7):
        e, pos = vX0, vX2
        a(f"""
        v_add_u32 v{e}, {64*i}, v{l}
        v_mul_u32_u24 v{pos}, s86, v{e}
        v_lshrrev_b32 v{pos}, 16, v{pos}
        v_mul_u32_u24 v{vX3}, 14, v{pos}
        v_sub_u32 v{e}, v{e}, v{vX3}
        """)
        lanecalc(a, pD + i, pos, [(0, 2, 3584), (2, 1, 8 * 3584), (3, 1, 4 * 3584), (4, 1, 16 * 3584)])
        a(f"v_lshl_add_u32 v{pD+i}, v{e}, 4, v{pD+i}")
        if i % 4:
            a(f"v_subrev_u32 v{pD+i}, {1024*(i%4)}, v{pD+i}")
    a(f"""
    v_mov_b32 v{pD+7}, 0x4000000
    {name}_wdone:
    s_mul_i32 s{sKs}, s{sXk}, s{sWst}
    """)
    for k in range(4):
        for g in wdma_ops((13 - k) % 4):
            a(g)
    a(f"""
    s_add_u32 s{SRD_K}, s6, s29
    s_addc_u32 s{SRD_K+1}, s7, 0
    s_mov_b32 s{SRD_K+2}, 0x100000
    s_mov_b32 s{SRD_K+3}, 0x00020000
    s_add_u32 s{SRD_V}, s8, s29
    s_addc_u32 s{SRD_V+1}, s9, 0
    s_mov_b32 s{SRD_V+2}, 0x100000
    s_mov_b32 s{SRD_V+3}, 0x00020000
    """)
    srd(a, SRD_WS, 84, 85, 64 << 20)
    lanecalc(a, vDm, l, [(2, 1, 512), (3, 3, 64), (0, 2, 16)])
    a(f"s_mul_i32 s{sTmp}, s{sKH}, {SLOT}")
    lanecalc(a, vVa, l, [(3, 1, 4128), (4, 1, 8320), (5, 1, 1024), (2, 1, 64), (0, 2, 8)], add=f"s{sTmp}")
    a(f"s_add_u32 s{sTmp}, s{sTmp}, {KB}")
    lanecalc(a, vKa, l, [(1, 1, 4128), (2, 1, 8320), (3, 1, 1024), (0, 1, 64), (4, 2, 16)], add=f"s{sTmp}")
    LQ, LG = vX2, vX3
    lanecalc(a, LQ, l, [(3, 1, 4128), (4, 1, 8320), (5, 1, 2048), (2, 1, 64), (0, 2, 8)], add=WB)
    lanecalc(a, LG, l, [(2, 2, 224), (4, 1, 896), (5, 1, 3584), (0, 2, 8)], add=WB)
    a(f"""
    s_lshl_b32 s3, s{sKH}, 9
    v_add_u32 v{pA}, s3, v{LQ}
    s_lshl_b32 s3, s{sKH}, 7
    v_add_u32 v{pC}, s3, v{LG}
    s_cmp_eq_u32 s{sKH}, 0
    s_cbranch_scc1 {name}_b0
    v_add_u32 v{pB}, {128*3+32}, v{LQ}
    v_add_u32 v{pB+1}, {128*3+32+1024}, v{LQ}
    v_add_u32 v{pB+2}, {128*7+32}, v{LQ}
    v_add_u32 v{pB+3}, {128*7+32+1024}, v{LQ}
    s_branch {name}_b1
    {name}_b0:
    v_add_u32 v{pB}, {WG_OFF+96}, v{LG}
    v_add_u32 v{pB+1}, {WG_OFF+96+1792}, v{LG}
    v_add_u32 v{pB+2}, {WU_OFF+96}, v{LG}
    v_add_u32 v{pB+3}, {WU_OFF+96+1792}, v{LG}
    {name}_b1:
    v_add_u32 v{pA+1}, {2*WSL}, v{pA}
    v_add_u32 v{pC+1}, {2*WSL}, v{pC}
    """)
    for i in range(4):
        a(f"v_add_u32 v{pB+4+i}, {2*WSL}, v{pB+i}")
    a(f"""
    s_lshl_b32 s3, s{sWv}, 11
    v_lshlrev_b32 v{vX0}, 4, v{l}
    v_add_u32 v{pXW}, s3, v{vX0}
    s_xor_b32 s3, s3, 0x800
    v_add_u32 v{pXR}, s3, v{vX0}
    """)


def wdma_ops(slot):
    groups = []
    for i in range(8):
        gi, t = i // 4, i % 4
        txt = []
        if t == 0:
            txt.append(f"s_add_u32 m0, s{sMb if gi else sMa}, {WB + slot*WSL}")
            if gi == 0:
                txt.append(f"s_add_u32 s{sW}, s{sKs}, s{sWcol}")
            else:
                txt.append("s_nop 0")
        txt.append(f"buffer_load_dwordx4 v{pD+i}, s[{SRD_W}:{SRD_W+3}], s{sW} offen offset:{1024*t} lds")
        if i == 1:
            txt.append(f"s_add_u32 s{sKs}, s{sKs}, s{sWst}")
        if i == 2:
            txt.append(f"s_cmp_eq_u32 s{sKs}, s{sWtot}\ns_cselect_b32 s{sKs}, 0, s{sKs}")
        groups.append("\n".join(txt))
    return groups


def bf16r(a, v, t):
    a(f"v_cvt_pk_bf16_f32 v{t}, v{v}, v{v}\nv_lshlrev_b32 v{v}, 16, v{t}")


def norm_ops(i):
    ops = []
    for qb in range(2):
        for r in range(4):
            src = aX + (qb * 14 + i) * 4 + r
            t = pT + 3 * ((qb * 4 + r) % 4)
            dst = pXO + (i % 3) * 8 + qb * 4 + r
            ops += [(f"v_accvgpr_read_b32 v{t}, a{src}", 1, 0),
                    (f"v_lshlrev_b32 v{t+1}, 16, v{t}", 1, 0),
                    (f"v_and_b32 v{t+2}, s{sC}, v{t}", 1, 0),
                    (f"v_fma_f32 v{t+1}, v{t+1}, v{pR+qb}, v{pNM+qb}", 1, 0),
                    (f"v_fma_f32 v{t+2}, v{t+2}, v{pR+qb}, v{pNM+qb}", 1, 0),
                    (f"v_cvt_pk_bf16_f32 v{dst}, v{t+1}, v{t+2}", 1, 0)]
        d = pXO + (i % 3) * 8 + qb * 4
        ops.append((f"ds_write_b128 v{pXW}, {r4('v', d)} offset:{(i%2)*8192 + qb*1024}", 1, 0, "ds", ("xw", i, qb)))
    return ops


def xread_ops(i):
    return [(f"ds_read_b128 {r4('v', pXP + (i%2)*8 + qb*4)}, v{pXR} offset:{(i%2)*8192 + qb*1024}", 1, 0, "ds", ("xr", i, qb)) for qb in range(2)]


def gen_prologue(a, name, cfg):
    l = vX4
    ones, D1, D2 = 0, 4, 12
    a(f"s_mov_b32 s{sC}, 0xffff0000")
    for r in range(4):
        a(f"v_mov_b32 v{ones+r}, 0x3f803f80")
    a(f"""
    v_lshrrev_b32 v{vX0}, 4, v{l}
    v_lshlrev_b32 v{vX0}, 2, v{vX0}
    v_and_b32 v{vX1}, 15, v{l}
    v_sub_u32 v{vX0}, v{vX1}, v{vX0}
    """)
    for r in range(4):
        a(f"v_cmp_eq_u32 s[{sM0+2*r}:{sM0+2*r+1}], {r}, v{vX0}")
    for i in range(14):
        a(f"s_waitcnt vmcnt({32 + 2*(13-i)})")
        for qb in range(2):
            x = r4('a', aX + (qb * 14 + i) * 4)
            d1, d2 = r4('v', D1 + 4 * qb), r4('v', D2 + 4 * qb)
            a(f"{MF} {d1}, {r4('v', ones)}, {x}, {d1 if i else '0'}")
            a(f"{MF} {d2}, {x}, {x}, {d2 if i else '0'}")
    if cfg.stamps:
        stamp(a, 1)
    a("s_mov_b32 s3, 0x3b124925")
    a("s_mov_b32 s86, 0x3727c5ac")
    for qb in range(2):
        t, u, m = pT + 4 * qb, pT + 4 * qb + 1, pT + 4 * qb + 2
        a(f"v_cndmask_b32 v{t}, 0, v{D2+4*qb}, s[{sM0}:{sM0+1}]")
        for r in range(1, 4):
            a(f"v_cndmask_b32 v{t}, v{t}, v{D2+4*qb+r}, s[{sM0+2*r}:{sM0+2*r+1}]")
        xreduce(a, "v_add_f32", t, u)
        a(f"""
        v_mul_f32 v{m}, s3, v{D1+4*qb}
        v_mul_f32 v{t}, s3, v{t}
        v_fma_f32 v{t}, -v{m}, v{m}, v{t}
        v_max_f32 v{t}, 0, v{t}
        """)
        bf16r(a, m, u)
        bf16r(a, t, u)
        a(f"v_add_f32 v{t}, s86, v{t}")
        bf16r(a, t, u)
        a(f"v_sqrt_f32 v{t}, v{t}")
        bf16r(a, t, u)
        a(f"""
        v_rcp_f32 v{pR+qb}, v{t}
        v_mul_f32 v{pNM+qb}, v{m}, v{pR+qb}
        v_sub_f32 v{pNM+qb}, 0, v{pNM+qb}
        """)
    for i in range(2):
        for op in norm_ops(i):
            a(op[0])
    a("s_waitcnt vmcnt(24) lgkmcnt(0)\ns_barrier")
    for i in range(2):
        for op in xread_ops(i):
            a(op[0])
    a("s_waitcnt lgkmcnt(0)")

    B = Builder(cfg, pF, [0, 1, 2, 3, 4] * 3)
    st = B.st
    issued = ["W0", "W1", "W2", "W3"]
    B.minread = -0.5
    for i in range(14):
        base = st.pos()
        slot = (13 - i) % 4
        h, so = slot // 2, (slot % 2) * WSL
        bop = [r4('v', pXO + (i % 3) * 8), r4('v', pXO + (i % 3) * 8 + 4), r4('v', pXP + (i % 2) * 8), r4('v', pXP + (i % 2) * 8 + 4)]
        for f in range(15):
            if f < 7:
                ad = [(pA + h, so + 128 * (f // 2) + 32 * (f % 2) + 1024 * hf) for hf in range(2)]
                acc = lambda qb, f=f: r4('v', (f * 4 + qb) * 4)
            elif f < 9:
                ad = [(pB + 4 * h + 2 * (f - 7) + hf, so) for hf in range(2)]
                acc = lambda qb, f=f: r4('v', (f * 4 + qb) * 4)
            else:
                c = f - 9
                ad = [(pC + h, so + (WU_OFF if c % 2 else WG_OFF) + 32 * (c // 2) + 1792 * hf) for hf in range(2)]
                acc = lambda qb, c=c: r4('a', (c * 4 + qb) * 4)
            rd = [lambda fr, x=ad[0]: f"ds_read_b64_tr_b16 v[{fr}:{fr+1}], v{x[0]} offset:{x[1]}",
                  lambda fr, x=ad[1]: f"ds_read_b64_tr_b16 v[{fr+2}:{fr+3}], v{x[0]} offset:{x[1]}"]
            ms = [lambda fr, qb=qb, acc=acc: f"{MF} {acc(qb)}, {r4('v', fr)}, {bop[qb]}, {acc(qb) if i else '0'}" for qb in range(4)]
            B.frag(f, rd, ms, extra_need=([("xr", i, 0), ("xr", i, 1)] if f == 0 else ()), pair=(f % 2 == 0 and f < 14) or f == 14 and False)
        bp = base + cfg.PBAR
        if i < 13:
            n = 8 * (len(issued) - 1 - issued.index(f"W{i+1}"))
            if "PF" in issued[issued.index(f"W{i+1}"):]:
                n -= 7
            B.add(bp - 0.2, f"s_waitcnt vmcnt({n})\ns_barrier", "need", [("xw", i + 1, 0), ("xw", i + 1, 1)], u=3)
            B.minread = bp - 0.1
            g = []
            if 1 <= i <= 10:
                issued.append(f"W{i+3}")
                g = wdma_ops((13 - (i + 3)) % 4)
            elif i == 11:
                issued.append("K0")
                g = dma_ops("K", 0)
                issued.append("PF")
                g.append(f"v_lshlrev_b32 v{vX0}, 7, v{l}\ns_add_u32 s{sV0}, s{sTV}, s{sBase}\nbuffer_load_dword v247, v{vX0}, s[{SRD_V}:{SRD_V+3}], s{sV0} offen")
            elif i == 12:
                issued.append("K1")
                g = dma_ops("K", 1)
            for n_, txt in enumerate(g):
                B.add(bp + 1 + cfg.PDW * n_ // 8 - 0.3, txt, "x", None, u=txt.count("\n") + 1)
        ops = []
        if 1 <= i < 13:
            ops += xread_ops(i + 1)
        if i + 2 < 14:
            ops += norm_ops(i + 2)
        B.deferred.append((ops, bp + 1, base + 59))
    B.finish(a)
    if cfg.stamps:
        stamp(a, 1)
    a(f"""
    s_mov_b32 s{sC+1}, 0x3db8aa3b
    s_lshl_b32 s3, s{sRG}, 15
    s_lshl_b32 s{sTmp}, s{sKH}, 14
    s_add_u32 s3, s3, s{sTmp}
    s_xor_b32 s{sTmp}, s3, 0x4000
    v_lshlrev_b32 v{vX0}, 4, v{l}
    v_add_u32 v{pXR}, s3, v{vX0}
    v_add_u32 v{pXW}, s{sTmp}, v{vX0}
    """)
    W0, W1, W2, W3 = pA, pA + 1, pC, pC + 1
    lanecalc(a, vX0, l, [(5, 1, 256), (0, 4, 16), (4, 1, 8)], stmp=86)
    a(f"""
    v_add_u32 v{W2}, s3, v{vX0}
    v_add_u32 v{W3}, s{sTmp}, v{vX0}
    s_lshl_b32 s3, s{sKH}, 12
    v_add_u32 v{W0}, s3, v{W2}
    v_add_u32 v{W1}, s3, v{W3}
    s_waitcnt vmcnt(0)
    s_barrier
    """)

    def qpost(f, wa, boff):
        for qb in range(4):
            r = (f * 4 + qb) * 4
            for k in range(4):
                a(f"v_mul_f32 v{r+k}, s{sC+1}, v{r+k}")
            a(f"v_cvt_pk_bf16_f32 v{r}, v{r}, v{r+1}")
            a(f"v_cvt_pk_bf16_f32 v{r+1}, v{r+2}, v{r+3}")
            a(f"ds_write_b64 v{wa[qb//2]}, v[{r}:{r+1}] offset:{(qb%2)*8192 + boff}")

    for f in range(7):
        qpost(f, (W0, W1), (f // 2) * 1024 + 512 * (f % 2))
    sH0, sH1, sGb = sMa, sMb, sKs
    a(f"""
    s_lshl_b32 s3, s{sRB}, 1
    s_add_u32 s3, s3, s{sRG}
    s_mul_i32 s3, s3, {ACT_RG_BYTES}
    s_add_u32 s3, s3, {128*4096}
    s_lshl_b32 s{sTmp}, s{sKH}, 11
    s_add_u32 s{sH0}, s3, s{sTmp}
    s_xor_b32 s{sTmp}, s{sTmp}, 0x800
    s_add_u32 s{sH1}, s3, s{sTmp}
    s_mul_i32 s{sGb}, s{sHD}, 7
    s_mov_b32 s{sC+2}, 0xc0135761
    s_mov_b32 s{sC+3}, 0xbdd2d3e8
    v_mov_b32 v{pB}, s{sC+2}
    v_lshlrev_b32 v{pB+1}, 4, v{l}
    """)

    def hpost(gsrc, usrc, fb_expr):
        a(fb_expr)
        a(f"""
        s_lshr_b32 s{sTmp}, s3, 1
        s_lshl_b32 s{sTmp}, s{sTmp}, 12
        s_and_b32 s3, s3, 1
        s_lshl_b32 s3, s3, 3
        s_add_u32 s{sTmp}, s{sTmp}, s3
        s_add_u32 s{sW}, s{sTmp}, s{sH0}
        s_add_u32 s{sWcol}, s{sTmp}, s{sH1}
        """)
        for qb in range(4):
            gf, gr = gsrc(qb)
            uf, ur = usrc(qb)
            T = pF + 12 * (qb % 2) * 2
            if gf == 'a':
                for k in range(4):
                    a(f"v_accvgpr_read_b32 v{T+k}, a{gr+k}")
                    a(f"v_accvgpr_read_b32 v{T+4+k}, a{ur+k}")
                gr, ur = T, T + 4
            Z = T + 8
            for k in range(4):
                a(f"v_mul_f32 v{Z+k}, v{gr+k}, v{gr+k}")
            for k in range(4):
                a(f"v_fma_f32 v{Z+k}, v{Z+k}, s{sC+3}, v{pB}")
            for k in range(4):
                a(f"v_mul_f32 v{Z+k}, v{Z+k}, v{gr+k}")
            for k in range(4):
                a(f"v_exp_f32 v{Z+k}, v{Z+k}")
            for k in range(4):
                a(f"v_mul_f32 v{ur+k}, v{ur+k}, v{gr+k}")
            for k in range(4):
                a(f"v_add_f32 v{Z+k}, 1.0, v{Z+k}")
            for k in range(4):
                a(f"v_rcp_f32 v{Z+k}, v{Z+k}")
            for k in range(4):
                a(f"v_mul_f32 v{Z+k}, v{Z+k}, v{ur+k}")
            a(f"v_cvt_pk_bf16_f32 v{Z+4}, v{Z}, v{Z+1}")
            a(f"v_cvt_pk_bf16_f32 v{Z+5}, v{Z+2}, v{Z+3}")
            a(f"buffer_store_dwordx2 v[{Z+4}:{Z+5}], v{pB+1}, s[{SRD_WS}:{SRD_WS+3}], s{sW if qb < 2 else sWcol} offen offset:{1024*(qb%2)}")

    a(f"s_cmp_eq_u32 s{sKH}, 0\ns_cbranch_scc1 {name}_pb0")
    qpost(7, (W2, W3), 3 * 1024 + 512)
    qpost(8, (W2, W3), 7 * 1024 + 512)
    a(f"s_branch {name}_pb1\n{name}_pb0:")
    hpost(lambda qb: ('v', (7 * 4 + qb) * 4), lambda qb: ('v', (8 * 4 + qb) * 4), f"s_add_u32 s3, s{sGb}, 3")
    a(f"{name}_pb1:")
    a("s_waitcnt lgkmcnt(0)\ns_barrier")
    for qb in range(4):
        for s in range(8):
            a(f"ds_read_b128 {r4('v', Q(qb, s))}, v{pXR if qb < 2 else pXW} offset:{(qb%2)*8192 + s*1024}")
    for f in range(3):
        hpost(lambda qb: ('a', ((2 * f) * 4 + qb) * 4), lambda qb: ('a', ((2 * f + 1) * 4 + qb) * 4),
              f"s_lshl_b32 s3, s{sKH}, 2\ns_add_u32 s3, s3, s{sGb}\ns_add_u32 s3, s3, {f}")
    a("s_waitcnt lgkmcnt(0)")


def gen_epilogue(a, name):
    l = vX4
    T = vS
    for qb in range(4):
        xreduce(a, "v_add_f32", vL + qb, vT + qb)
    a(f"""
    v_lshlrev_b32 v{vX0}, 4, v{l}
    s_lshl_b32 s3, s{sWv}, 15
    v_add_u32 v{vX1}, s3, v{vX0}
    s_xor_b32 s3, s3, 0x8000
    v_add_u32 v{vX2}, s3, v{vX0}
    s_waitcnt lgkmcnt(0)
    s_barrier
    v_mov_b32 v{T}, v{C(2)}
    v_mov_b32 v{T+1}, v{vL+2}
    v_mov_b32 v{T+2}, v{C(3)}
    v_mov_b32 v{T+3}, v{vL+3}
    s_lshl_b32 s3, s{sWv}, 10
    s_add_u32 s3, s3, 131072
    v_add_u32 v{vX3}, s3, v{vX0}
    ds_write_b128 v{vX3}, v[{T}:{T+3}]
    s_xor_b32 s3, s3, 0x400
    v_add_u32 v{vX3}, s3, v{vX0}
    """)
    for i in range(32):
        a(f"ds_write_b128 v{vX1}, a[{128+4*i}:{128+4*i+3}] offset:{1024*i}")
    a(f"""
    s_waitcnt lgkmcnt(0)
    s_barrier
    ds_read_b128 v[{T}:{T+3}], v{vX3}
    """)
    R = 0
    for i in range(14):
        a(f"ds_read_b128 v[{R+4*i}:{R+4*i+3}], v{vX2} offset:{1024*i}")
    a("s_waitcnt lgkmcnt(14)")
    FA, FB = vT, vT + 2
    for qb in range(2):
        cB, lB = T + 2 * qb, T + 2 * qb + 1
        a(f"""
        v_min_f32 v{T+8}, v{C(qb)}, v{cB}
        v_sub_f32 v{FA+qb}, v{T+8}, v{C(qb)}
        v_sub_f32 v{FB+qb}, v{T+8}, v{cB}
        v_exp_f32 v{FA+qb}, v{FA+qb}
        v_exp_f32 v{FB+qb}, v{FB+qb}
        v_mul_f32 v{T+9}, v{FA+qb}, v{vL+qb}
        v_fma_f32 v{T+9}, v{FB+qb}, v{lB}, v{T+9}
        v_rcp_f32 v{T+9}, v{T+9}
        v_mul_f32 v{FA+qb}, v{FA+qb}, v{T+9}
        v_mul_f32 v{FB+qb}, v{FB+qb}, v{T+9}
        """)
    a(f"""
    s_lshl_b32 s3, s{sRB}, 1
    s_add_u32 s3, s3, s{sRG}
    s_mul_i32 s3, s3, {ACT_RG_BYTES}
    s_lshl_b32 s10, s{sHD}, 15
    s_add_u32 s3, s3, s10
    s_lshl_b32 s10, s{sKH}, 11
    s_add_u32 s3, s3, s10
    """)
    nread = 14
    W = vS + 16
    for qb in range(2):
        for sg in range(8):
            i0 = (qb * 16 + 2 * sg)
            a(f"s_waitcnt lgkmcnt({max(nread - (i0 + 2), 0)})")
            w = W + 16 * (sg % 2)
            for k in range(8):
                a(f"v_accvgpr_read_b32 v{w+k}, a{4*i0+k}")
            for k in range(8):
                a(f"v_mul_f32 v{R+4*i0+k}, v{FB+qb}, v{R+4*i0+k}")
            for k in range(8):
                a(f"v_fma_f32 v{w+k}, v{w+k}, v{FA+qb}, v{R+4*i0+k}")
            for k in range(4):
                a(f"v_cvt_pk_bf16_f32 v{w+8+k}, v{w+2*k}, v{w+2*k+1}")
            for _ in range(2):
                if nread < 32:
                    a(f"ds_read_b128 v[{R+4*nread}:{R+4*nread+3}], v{vX2} offset:{1024*nread}")
                    nread += 1
            a(f"s_add_u32 s10, s3, {4096*sg}")
            a(f"buffer_store_dwordx4 v[{w+8}:{w+11}], v{vX0}, s[{SRD_WS}:{SRD_WS+3}], s10 offen offset:{1024*qb}")


def gen_ka(name="ka_kernel", stampk=None, cfg=None):
    cfg = cfg or Cfg()
    cfg.stamps = stampk is not None
    a = Asm()
    gen_setup(a, name, cfg)
    gen_prologue(a, name, cfg)
    gen_attn(a, name, cfg)
    if cfg.stamps:
        stamp(a, 6)
    gen_epilogue(a, name)
    if cfg.stamps:
        stamp_end(a, stampk, 128, sWv)
    a(f"s_endpgm")
    gen_slow(a, name)
    a(f"{name}_end:\ns_endpgm")
    p = a.padded()
    items = p.items
    i0 = items.index(f"{name}_loop:")
    i1 = max(i for i, it in enumerate(items) if not isinstance(it, str) and it.text.endswith(f"{name}_loop"))
    sp = seam_pad(items[i0:i1 + 1])
    assert sp <= 0, sp
    return kernel_header(name) + p.text(), kernel_desc(name, 512, 256)


if __name__ == "__main__":
    t, d = gen_ka()
    open("ka.txt", "w").write(t)
```

```python
from asmlib import *

ACT_STEPS = 184
ACT_RG_BYTES = ACT_STEPS * 4096
ACT_BYTES = 32 * ACT_RG_BYTES
KB_LDS = 131072 + 16384
KB_GRID = 224


def gen_kb(name="kb_kernel", stamp=None):
    a = Asm()
    VB = 32
    VA = 160
    vL16, vX = 1, 2
    vD = 4
    vT = 8
    vXd = 12
    vt0, vt1, vt2, vt3 = 20, 21, 22, 23
    sW, sA, sU, sUend, sWb, sCG, sWv = 30, 31, 32, 33, 34, 35, 36
    SRD_W, SRD_A, SRD_X, SRD_O = 20, 24, 40, 44

    a(f"""
    s_cmp_ge_u32 s2, {KB_GRID}
    s_cbranch_scc1 {name}_end
    {"s_memrealtime s[64:65]" if stamp is not None else ""}
    s_load_dwordx2 s[4:5], s[0:1], 0
    s_load_dwordx2 s[6:7], s[0:1], 32
    s_load_dwordx2 s[8:9], s[0:1], 64
    s_load_dwordx2 s[10:11], s[0:1], 72
    s_load_dwordx2 s[12:13], s[0:1], 88
    v_lshrrev_b32 v{vt0}, 6, v0
    v_and_b32 v0, 63, v0
    s_and_b32 s14, s2, 7
    v_readfirstlane_b32 s{sWv}, v{vt0}
    s_lshr_b32 s15, s2, 3
    s_mul_i32 s16, s15, 37
    s_lshr_b32 s16, s16, 8
    s_mul_i32 s17, s16, 7
    s_sub_u32 s{sCG}, s15, s17
    s_lshl_b32 s14, s14, 2
    s_add_u32 s14, s14, s16
    s_lshl_b32 s{sCG}, s{sCG}, 7
    """)
    a(f"""
    v_lshlrev_b32 v{vL16}, 4, v0
    v_and_b32 v{vt0}, 15, v0
    s_lshl_b32 s15, s14, 6
    s_lshl_b32 s16, s{sWv}, 4
    s_add_u32 s15, s15, s16
    v_add_u32 v{vt0}, s15, v{vt0}
    s_movk_i32 s16, 896
    v_mul_lo_u32 v{vt0}, v{vt0}, s16
    v_lshrrev_b32 v{vt1}, 4, v0
    v_lshlrev_b32 v{vt1}, 3, v{vt1}
    v_add3_u32 v{vX}, v{vt0}, v{vt1}, s{sCG}
    """)
    a(f"""
    v_lshrrev_b32 v{vt0}, 3, v0
    v_mul_lo_u32 v{vt1}, v{vt0}, s16
    v_lshrrev_b32 v{vt0}, 1, v{vt0}
    v_bfe_u32 v{vt2}, v0, 1, 2
    v_xor_b32 v{vt0}, v{vt0}, v{vt2}
    v_lshlrev_b32 v{vt0}, 5, v{vt0}
    v_and_b32 v{vt2}, 1, v0
    v_lshlrev_b32 v{vt2}, 4, v{vt2}
    v_add3_u32 v{vD}, v{vt0}, v{vt1}, v{vt2}
    v_add_u32 v{vD+1}, {6144}, v{vD}
    v_add_u32 v{vD+2}, {2*6144}, v{vD}
    v_add_u32 v{vD+3}, {3*6144}, v{vD}
    """)
    a(f"""
    s_lshl_b32 s{sWb}, s{sWv}, 15
    v_bfe_u32 v{vt0}, v0, 2, 3
    v_lshlrev_b32 v{vt1}, 7, v{vt0}
    v_lshrrev_b32 v{vt2}, 5, v0
    v_lshlrev_b32 v{vt2}, 10, v{vt2}
    v_add3_u32 v{vt1}, v{vt1}, v{vt2}, s{sWb}
    v_and_b32 v{vt2}, 3, v0
    v_lshlrev_b32 v{vt2}, 3, v{vt2}
    v_add_u32 v{vt1}, v{vt1}, v{vt2}
    v_lshrrev_b32 v{vt0}, 1, v{vt0}
    """)
    for cb in range(4):
        a(f"""
        v_xor_b32 v{vt2}, {cb}, v{vt0}
        v_lshl_add_u32 v{vT+cb}, v{vt2}, 5, v{vt1}
        """)
    a(f"""
    s_mul_i32 s{sU}, s{sWv}, 6
    s_add_u32 s{sUend}, s{sU}, 6
    s_min_u32 s{sUend}, s{sUend}, 23
    s_mul_i32 s{sA}, s14, {ACT_RG_BYTES}
    s_lshl_b32 s15, s{sU}, 15
    s_add_u32 s{sA}, s{sA}, s15
    s_mul_i32 s{sW}, s{sU}, {8*32*896}
    s_add_u32 s{sW}, s{sW}, s{sCG}
    s_waitcnt lgkmcnt(0)
    s_mov_b32 s{SRD_X}, s4
    s_mov_b32 s{SRD_X+1}, s5
    s_mov_b32 s{SRD_X+2}, {2048*896}
    s_mov_b32 s{SRD_X+3}, 0x00020000
    s_mov_b32 s{SRD_O}, s10
    s_mov_b32 s{SRD_O+1}, s11
    s_mov_b32 s{SRD_O+2}, {2048*896}
    s_mov_b32 s{SRD_O+3}, 0x00020000
    s_mov_b32 s{SRD_A}, s12
    s_mov_b32 s{SRD_A+1}, s13
    s_mov_b32 s{SRD_A+2}, {ACT_BYTES}
    s_mov_b32 s{SRD_A+3}, 0x00020000
    s_mov_b32 s{SRD_W}, s6
    s_mov_b32 s{SRD_W+1}, s7
    s_mov_b32 s{SRD_W+2}, {4096*896}
    s_mov_b32 s{SRD_W+3}, 0x00020000
    s_cmp_lt_u32 s{sU}, 16
    s_cbranch_scc1 {name}_wo
    s_mov_b32 s{SRD_W}, s8
    s_mov_b32 s{SRD_W+1}, s9
    s_mov_b32 s{SRD_W+2}, {1792*896}
    s_sub_u32 s{sW}, s{sW}, {4096*896}
    {name}_wo:
    """)
    for cb in range(4):
        a(f"buffer_load_dwordx2 v[{vXd+2*cb}:{vXd+2*cb+1}], v{vX}, s[{SRD_X}:{SRD_X+3}], 0 offen offset:{32*cb}")

    def dma(p):
        a(f"s_add_u32 m0, s{sWb}, {4096*p}")
        for q in range(4):
            a(f"buffer_load_dwordx4 v{vD+q}, s[{SRD_W}:{SRD_W+3}], s{sW} offen offset:{1024*q} lds")
        a(f"s_add_u32 s{sW}, s{sW}, {32*896}")

    def ldb(p, rb):
        r = VB + 16 * p + 4 * rb
        a(f"buffer_load_dwordx4 v[{r}:{r+3}], v{vL16}, s[{SRD_A}:{SRD_A+3}], s{sA} offen offset:{1024*rb}")

    def trd(p, st, cb, hf):
        r = VA + 16 * st + 4 * cb + 2 * hf
        a(f"ds_read_b64_tr_b16 v[{r}:{r+1}], v{vT+cb} offset:{4096*p+2048*hf}")

    for p in range(8):
        dma(p)
        for rb in range(4):
            ldb(p, rb)
        a(f"s_add_u32 s{sA}, s{sA}, 4096")
        if p == 6:
            a("s_waitcnt vmcnt(52)")
    for i in range(64):
        a(f"v_accvgpr_write_b32 a{i}, 0")
    a("s_waitcnt vmcnt(56)")
    for cb in range(4):
        for hf in range(2):
            trd(0, 0, cb, hf)

    body = Asm()
    b = body
    b(f"""
    {name}_loop:
    s_add_u32 s{sU}, s{sU}, 1
    s_cmp_lg_u32 s{sU}, 16
    s_cbranch_scc1 {name}_n1
    s_mov_b32 s{SRD_W}, s8
    s_mov_b32 s{SRD_W+1}, s9
    s_mov_b32 s{SRD_W+2}, {1792*896}
    s_mov_b32 s{sW}, s{sCG}
    {name}_n1:
    s_cmp_lg_u32 s{sU}, s{sUend}
    s_cbranch_scc1 {name}_n2
    s_mov_b32 s{SRD_W+2}, 0
    s_mov_b32 s{SRD_A+2}, 0
    {name}_n2:
    s_cmp_lg_u32 s{sU}, 17
    s_cbranch_scc1 {name}_n3
    s_nop 7
    v_add_u32 v{vt0}, 131072, v{vL16}
    """)
    for i in range(16):
        b(f"ds_write_b128 v{vt0}, a[{4*i}:{4*i+3}] offset:{1024*i}")
    b("s_waitcnt lgkmcnt(0)")
    for i in range(64):
        b(f"v_accvgpr_write_b32 a{i}, 0")
    b("s_nop 1")
    b(f"{name}_n3:")
    a_save = a
    for p in range(8):
        st = p % 2
        b("s_waitcnt vmcnt(48) lgkmcnt(0)")
        seq = []
        b(f"s_add_u32 m0, s{sWb}, {4096*p}")
        pn = (p + 1) % 8
        fill = []
        for q in range(4):
            fill.append(f"buffer_load_dwordx4 v{vD+q}, s[{SRD_W}:{SRD_W+3}], s{sW} offen offset:{1024*q} lds")
        for cb in range(4):
            for hf in range(2):
                r = VA + 16 * (1 - st) + 4 * cb + 2 * hf
                fill.insert(2 * cb + hf, f"ds_read_b64_tr_b16 v[{r}:{r+1}], v{vT+cb} offset:{4096*pn+2048*hf}")
        k = 0
        for rb in range(4):
            for cb in range(4):
                d = 16 * rb + 4 * cb
                ra = VA + 16 * st + 4 * cb
                rbb = VB + 16 * p + 4 * rb
                b(f"v_mfma_f32_16x16x32_bf16 a[{d}:{d+3}], v[{ra}:{ra+3}], v[{rbb}:{rbb+3}], a[{d}:{d+3}]")
                if k < len(fill):
                    b(fill[k])
                    k += 1
            r = VB + 16 * p + 4 * rb
            b(f"buffer_load_dwordx4 v[{r}:{r+3}], v{vL16}, s[{SRD_A}:{SRD_A+3}], s{sA} offen offset:{1024*rb}")
        assert k == len(fill)
        b(f"s_add_u32 s{sW}, s{sW}, {32*896}")
        b(f"s_add_u32 s{sA}, s{sA}, 4096")
    b(f"""
    s_cmp_lt_u32 s{sU}, s{sUend}
    s_cbranch_scc1 {name}_loop
    """)
    a.extend(body)
    a(f"""
    s_waitcnt vmcnt(0) lgkmcnt(0)
    v_add_u32 v{vt0}, s{sWb}, v{vL16}
    """)
    for i in range(16):
        a(f"ds_write_b128 v{vt0}, a[{4*i}:{4*i+3}] offset:{1024*i}")
    a(f"""
    s_lshl_b32 s15, s{sWv}, 12
    v_add_u32 v{vt0}, s15, v{vL16}
    v_add_u32 v{vt1}, 0x10000, v{vt0}
    v_add_u32 v{vt2}, 0x20000, v{vt0}
    s_waitcnt lgkmcnt(0)
    s_barrier
    """)
    R = 32
    sets = [(vt0, 0), (vt0, 32768), (vt2, 0), (vt1, 0), (vt1, 32768)]
    for cb in range(4):
        for si, (va, off) in enumerate(sets):
            r = R + 16 * si + 4 * cb
            a(f"ds_read_b128 v[{r}:{r+3}], v{va} offset:{off+1024*cb}")
    a("s_mov_b32 s16, 0xbfb8aa3b")
    a("s_mov_b32 s17, 0xffff0000")
    T = 120
    for cb in range(4):
        a(f"s_waitcnt lgkmcnt({15-5*cb})")
        S = [R + 4 * cb + r for r in range(4)]
        Y = [R + 48 + 4 * cb + r for r in range(4)]
        for r in range(4):
            a(f"v_add_f32 v{S[r]}, v{S[r]}, v{S[r]+16}")
            a(f"v_add_f32 v{Y[r]}, v{Y[r]}, v{Y[r]+16}")
        for r in range(4):
            a(f"v_add_f32 v{S[r]}, v{S[r]}, v{S[r]+32}")
        for h in range(2):
            a(f"v_cvt_pk_bf16_f32 v{T+h}, v{Y[2*h]}, v{Y[2*h+1]}")
            a(f"v_cvt_pk_bf16_f32 v{T+2+h}, v{S[2*h]}, v{S[2*h+1]}")
        for h in range(2):
            a(f"v_lshlrev_b32 v{Y[2*h]}, 16, v{T+h}")
            a(f"v_and_b32 v{Y[2*h+1]}, s17, v{T+h}")
            a(f"v_lshlrev_b32 v{S[2*h]}, 16, v{T+2+h}")
            a(f"v_and_b32 v{S[2*h+1]}, s17, v{T+2+h}")
        for r in range(4):
            a(f"v_mul_f32 v{T+4+r}, s16, v{Y[r]}")
        for r in range(4):
            a(f"v_exp_f32 v{T+4+r}, v{T+4+r}")
        for r in range(4):
            a(f"v_add_f32 v{T+4+r}, 1.0, v{T+4+r}")
        for r in range(4):
            a(f"v_rcp_f32 v{T+4+r}, v{T+4+r}")
        for r in range(4):
            a(f"v_mul_f32 v{Y[r]}, v{Y[r]}, v{T+4+r}")
        for h in range(2):
            a(f"v_cvt_pk_bf16_f32 v{T+h}, v{Y[2*h]}, v{Y[2*h+1]}")
        for h in range(2):
            a(f"v_lshlrev_b32 v{Y[2*h]}, 16, v{T+h}")
            a(f"v_and_b32 v{Y[2*h+1]}, s17, v{T+h}")
        for r in range(4):
            a(f"v_mul_f32 v{S[r]}, v{S[r]}, v{Y[r]}")
        for h in range(2):
            a(f"v_cvt_pk_bf16_f32 v{T+h}, v{S[2*h]}, v{S[2*h+1]}")
        for h in range(2):
            a(f"v_lshlrev_b32 v{S[2*h]}, 16, v{T+h}")
            a(f"v_and_b32 v{S[2*h+1]}, s17, v{T+h}")
            a(f"v_lshlrev_b32 v{Y[2*h]}, 16, v{vXd+2*cb+h}")
            a(f"v_and_b32 v{Y[2*h+1]}, s17, v{vXd+2*cb+h}")
        for r in range(4):
            a(f"v_add_f32 v{S[r]}, v{S[r]}, v{Y[r]}")
        for h in range(2):
            a(f"v_cvt_pk_bf16_f32 v{T+8+2*cb+h}, v{S[2*h]}, v{S[2*h+1]}")
        a(f"buffer_store_dwordx2 v[{T+8+2*cb}:{T+9+2*cb}], v{vX}, s[{SRD_O}:{SRD_O+3}], 0 offen offset:{32*cb}")
    if stamp is not None:
        stamp_end(a, stamp, 160, sWv)
    a(f"""
    {name}_end:
    s_endpgm
    """)
    p = a.padded()
    return kernel_header(name) + p.text(), kernel_desc(name, 192 + 64, 192)


if __name__ == "__main__":
    t, d = gen_kb()
    print(t)
```

```python
from asmlib import *


class Stream:
    def __init__(self):
        self.mf = []
        self.fill = []
        self.seq = 0

    def pos(self):
        return len(self.mf)

    def mfma(self, text, need=()):
        self.mf.append((text, tuple(need)))

    def add(self, pos, text, kind="x", fid=None):
        self.fill.append((pos, self.seq, text, kind, fid))
        self.seq += 1

    def emit(self, a, state=None):
        out = list(state or [])
        fills = sorted(self.fill, key=lambda f: (f[0], f[1]))
        k = 0
        cuts = {}

        def do_fill(f):
            nonlocal out
            pos, _, text, kind, fid = f
            if kind == "cut":
                cuts[text] = (len(a.items), list(out))
                return
            if kind == "ds":
                out.append(fid)
                assert len(out) <= 15, "too many outstanding ds ops"
            if kind == "waitall":
                out = []
            if kind == "need":
                wait(fid)
            a(text)

        def wait(need):
            nonlocal out
            idx = [i for i, f in enumerate(out) if f in need]
            if idx:
                n = len(out) - 1 - max(idx)
                a(f"s_waitcnt lgkmcnt({n})")
                out = out[max(idx) + 1:]

        for i, (text, need) in enumerate(self.mf):
            while k < len(fills) and fills[k][0] <= i:
                do_fill(fills[k])
                k += 1
            wait(need)
            a(text)
        while k < len(fills):
            do_fill(fills[k])
            k += 1
        return cuts, out
```

```python
import sys, importlib
sys.path.insert(0, "gen")
from asmlib import *

HEADER = open("recurrent_scan__gqa_block_cached__glu_gated_geglu__prompt.s.ref").read().split("; Override launch geometry")[0]

def assemble(kernels, path):
    s = HEADER
    for name, grid, lds, text, desc in kernels:
        s += f"; @launch kernel={name} grid=({grid},1,1) block=(256,1,1) lds={lds}\n"
    s += '.amdgcn_target "amdgcn-amd-amdhsa--gfx950"\n.text\n'
    seen = set()
    for name, grid, lds, text, desc in kernels:
        if name in seen: continue
        seen.add(name)
        s += text
    s += '.section .rodata,"a"\n'
    seen = set()
    for name, grid, lds, text, desc in kernels:
        if name in seen: continue
        seen.add(name)
        s += desc
    open(path, "w").write(s)

if __name__ == "__main__":
    what = sys.argv[1]
    out = sys.argv[2]
    import kb
    ks = []
    if what == "kb":
        t, d = kb.gen_kb(stamp=1)
        ks.append(("kb_kernel", kb.KB_GRID, kb.KB_LDS, t, d))
    if what in ("attn", "attn_kb"):
        import ka
        t, d = ka.gen_ka(stampk=0)
        ks.append(("ka_kernel", ka.KA_GRID, ka.KA_LDS_TOTAL, t, d))
        if what == "attn_kb":
            t, d = kb.gen_kb(stamp=1)
            ks.append(("kb_kernel", kb.KB_GRID, kb.KB_LDS, t, d))
    if what in ("full", "final"):
        import ka2
        st = what == "full"
        t, d = ka2.gen_ka(stampk=0 if st else None)
        ks.append(("ka_kernel", ka2.KA_GRID, ka2.KA_LDS, t, d))
        t, d = kb.gen_kb(stamp=1 if st else None)
        ks.append(("kb_kernel", kb.KB_GRID, kb.KB_LDS, t, d))
    assemble(ks, out)
```

```python
import re

TRANS = ("v_exp_f32", "v_log_f32", "v_rcp_f32", "v_rsq_f32", "v_sqrt_f32", "v_sin_f32", "v_cos_f32", "v_rcp_iflag_f32")
_reg_re = re.compile(r"^(-|\|)?(abs\()?([vas])(\d+|\[(\d+):(\d+)\])\)?\|?$")


def parse_reg(tok):
    tok = tok.strip()
    if tok in ("vcc", "exec", "m0", "scc", "vcc_lo", "vcc_hi"):
        return [("x", "vcc" if tok.startswith("vcc") else tok)]
    m = _reg_re.match(tok)
    if not m:
        return []
    f = m.group(3)
    if m.group(5) is not None:
        return [(f, i) for i in range(int(m.group(5)), int(m.group(6)) + 1)]
    return [(f, int(m.group(4)))]


class Ins:
    __slots__ = ("text", "op", "dst", "src", "kind", "passes", "srcC", "srcAB", "data", "lds_dma")

    def __init__(self, text):
        self.text = text
        t = text.split(";")[0].strip()
        parts = t.split(None, 1)
        op = parts[0]
        self.op = op
        rest = parts[1] if len(parts) > 1 else ""
        ops = [o.strip() for o in rest.split(",")] if rest else []
        mods = []
        if ops:
            sp = ops[-1].split()
            if sp:
                ops[-1] = sp[0]
                mods = sp[1:]
        self.dst, self.src = [], []
        self.srcC, self.srcAB, self.data = [], [], []
        self.passes = 0
        self.lds_dma = False
        R = parse_reg
        if op.startswith("v_mfma"):
            self.kind = "mfma"
            self.passes = 4 if "16x16x32" in op else 8
            self.dst = R(ops[0])
            self.srcAB = R(ops[1]) + R(ops[2])
            self.srcC = R(ops[3])
            self.src = self.srcAB + self.srcC
        elif op.startswith("v_"):
            self.kind = "trans" if op.replace("_e32", "").replace("_e64", "") in TRANS else "valu"
            if op.startswith("v_permlane") and "swap" in op:
                self.kind = "permlane"
                self.dst = R(ops[0]) + R(ops[1])
                self.src = R(ops[0]) + R(ops[1])
            elif op.startswith("v_cmpx"):
                raise ValueError("no cmpx")
            elif op.startswith(("v_add_co", "v_sub_co", "v_addc_co", "v_subb_co")):
                self.dst = R(ops[0]) + R(ops[1])
                for o in ops[2:]:
                    self.src += R(o)
            else:
                self.dst = R(ops[0])
                for o in ops[1:]:
                    self.src += R(o)
                if op.startswith(("v_fmac", "v_dot2c", "v_pk_fmac")):
                    self.src += self.dst
                if op.startswith("v_dot"):
                    self.kind = "dot"
                if "dpp" in op or any(m.startswith(("row_", "quad_perm", "wave_")) for m in mods):
                    self.kind = "dpp"
                if op.startswith("v_cndmask") and len(ops) == 3:
                    self.src += [("x", "vcc")]
        elif op.startswith("ds_"):
            self.kind = "ds"
            if op.startswith(("ds_read", "ds_bpermute", "ds_permute", "ds_swizzle")):
                self.dst = R(ops[0])
                for o in ops[1:]:
                    self.src += R(o)
            else:
                for o in ops:
                    self.src += R(o)
                for o in ops[1:]:
                    self.data += R(o)
        elif op.startswith(("buffer_", "global_")):
            self.kind = "vmem"
            allmods = mods
            if "lds" in allmods or "_lds_" in op:
                self.lds_dma = True
                for o in ops:
                    self.src += R(o)
                self.src += [("x", "m0")]
            elif "load" in op:
                self.dst = R(ops[0])
                for o in ops[1:]:
                    self.src += R(o)
            else:
                for o in ops:
                    self.src += R(o)
                self.data = R(ops[0]) if op.startswith("buffer_") else R(ops[1])
        elif op.startswith("s_"):
            self.kind = "salu"
            if op.startswith(("s_cmp", "s_bitcmp", "s_cbranch", "s_branch", "s_waitcnt", "s_barrier", "s_nop", "s_endpgm", "s_setprio", "s_sleep")):
                for o in ops:
                    self.src += R(o)
            else:
                if ops:
                    self.dst = R(ops[0])
                for o in ops[1:]:
                    self.src += R(o)
                if "saveexec" in op:
                    self.dst += [("x", "exec")]
        else:
            raise ValueError("unknown instruction: " + text)

    def states(self):
        if self.op == "s_nop":
            return int(self.text.split(";")[0].split()[1], 0) + 1
        return 1


VALUK = ("valu", "trans", "permlane", "dpp", "dot")


def required(prev, cur):
    need = 0
    pd = set(prev.dst)
    if prev.kind in VALUK:
        vd = {r for r in pd if r[0] in "va"}
        sd = {r for r in pd if r[0] in "sx"}
        if cur.kind == "mfma" and vd & set(cur.src):
            need = max(need, 2)
        if cur.kind in ("permlane", "dpp") and vd & set(cur.src):
            need = max(need, 2)
        if cur.op.startswith(("v_readfirstlane", "v_readlane")) and vd & set(cur.src):
            need = max(need, 1)
        if prev.kind == "trans" and cur.kind in VALUK + ("mfma",) and cur.kind != "trans" and vd & set(cur.src + cur.dst):
            need = max(need, 1)
        if prev.kind == "trans" and cur.kind in ("ds", "vmem") and vd & set(cur.src):
            need = max(need, 1)
        if prev.kind == "dot" and vd & set(cur.src + cur.dst):
            if not (cur.op == prev.op and not (vd & set(x for x in cur.src if x not in cur.dst))):
                need = max(need, 3)
        if sd:
            if cur.kind in VALUK and sd & set(cur.src):
                need = max(need, 2 if not cur.op.startswith(("v_readlane", "v_writelane")) else 4)
            if cur.kind == "vmem" and sd & set(cur.src):
                need = max(need, 5)
            if cur.kind == "salu" and sd & set(cur.src):
                need = max(need, 1)
            if ("x", "exec") in sd:
                need = max(need, 5)
    if prev.kind == "mfma":
        d = pd
        p = prev.passes
        raw = {2: 5, 4: 8, 8: 12, 16: 20}[p]
        if cur.kind == "mfma":
            if d & set(cur.srcAB):
                need = max(need, raw)
            if d & set(cur.srcC):
                if not (cur.srcC == prev.dst and cur.passes == prev.passes):
                    need = max(need, {2: 4, 4: 6, 8: 10, 16: 18}[p])
            elif d & set(cur.dst):
                need = max(need, {2: 4, 4: 6, 8: 10, 16: 18}[p])
        elif cur.kind in VALUK or cur.kind in ("ds", "vmem"):
            if d & (set(cur.src) | set(cur.dst)):
                need = max(need, raw)
        if cur.kind in VALUK and set(prev.srcC) & set(cur.dst):
            need = max(need, {2: 1, 4: 3, 8: 7, 16: 15}[p])
    if prev.kind == "salu" and ("x", "m0") in pd and (cur.lds_dma):
        need = max(need, 1)
    if prev.kind == "vmem" and len(prev.data) >= 3 and set(prev.data) & set(cur.dst):
        need = max(need, 2 if cur.kind in VALUK else 1)
    if prev.kind == "salu" and ("x", "exec") in pd and cur.kind == "mfma":
        need = max(need, 1)
    return need


class Asm:
    def __init__(self):
        self.items = []

    def __call__(self, text):
        for line in text.split("\n"):
            line = line.strip()
            if not line:
                continue
            if line.endswith(":") or line.startswith((".", ";")):
                self.items.append(line)
            else:
                self.items.append(Ins(line))

    def label(self, name):
        self.items.append(name + ":")

    def extend(self, other):
        self.items.extend(other.items)

    def padded(self, lookback=24):
        out = []
        hist = []
        pos = 0
        nn = 0
        for it in self.items:
            if isinstance(it, str):
                out.append(it)
                continue
            need_pad = 0
            for (p, ppos) in hist[-lookback:]:
                r = required(p, it)
                if r:
                    have = pos - ppos - p.states()
                    if have < r:
                        need_pad = max(need_pad, r - have)
            while need_pad > 0:
                k = min(need_pad, 16)
                n = Ins(f"s_nop {k-1}")
                out.append(n)
                hist.append((n, pos))
                pos += k
                need_pad -= k
                nn += 1
            out.append(it)
            hist.append((it, pos))
            pos += it.states()
        a = Asm()
        a.items = out
        a.nops_added = nn
        return a

    def text(self):
        return "\n".join(it if isinstance(it, str) else "    " + it.text for it in self.items) + "\n"


def resolve_vm(a):
    cnt = 0
    last = {}
    out = []
    for it in a.items:
        if not isinstance(it, str):
            if it.kind == "vmem":
                cnt += 1
                if ";@" in it.text:
                    last[it.text.split(";@")[1].strip()] = cnt
                    it = Ins(it.text.split(";@")[0].rstrip())
            elif it.op == "s_waitcnt" and "(@" in it.text:
                m = re.search(r"vmcnt\(@([\w.]+)\)", it.text)
                n = cnt - last[m.group(1)]
                assert 0 <= n <= 63, (it.text, n)
                it = Ins(it.text.replace(m.group(0), f"vmcnt({n})"))
        out.append(it)
    a.items = out
    return a


def seam_pad(body_items, lookback=24):
    ins = [i for i in body_items if not isinstance(i, str)]
    tail = ins[-lookback:]
    head = ins[:lookback]
    worst = 0
    tpos = []
    pos = 0
    for t in tail:
        tpos.append(pos)
        pos += t.states()
    end = pos
    hp = end
    for h in head:
        for t, tp in zip(tail, tpos):
            r = required(t, h)
            if r:
                have = hp - tp - t.states()
                worst = max(worst, r - have)
        hp += h.states()
    return worst


def kernel_header(name):
    return f".globl {name}\n.p2align 8\n.type {name},@function\n{name}:\n"


def kernel_desc(name, vgpr, accum, sgpr=102):
    return f""".p2align 6
.amdhsa_kernel {name}
  .amdhsa_next_free_vgpr {vgpr}
  .amdhsa_next_free_sgpr {sgpr}
  .amdhsa_accum_offset {accum}
  .amdhsa_group_segment_fixed_size 0
  .amdhsa_kernarg_size 96
  .amdhsa_user_sgpr_count 2
  .amdhsa_user_sgpr_kernarg_segment_ptr 1
  .amdhsa_system_sgpr_workgroup_id_x 1
  .amdhsa_float_denorm_mode_32 3
  .amdhsa_float_denorm_mode_16_64 3
.end_amdhsa_kernel
"""


STAMP_OFF = 240 << 20


def stamp(a, k, clk=False):
    a(f"{'s_memtime' if clk else 's_memrealtime'} s[{64+2*k}:{65+2*k}]")


def stamp_end(a, kidx, vt, swave):
    a(f"""
    s_waitcnt vmcnt(0) lgkmcnt(0)
    s_memrealtime s[78:79]
    s_load_dwordx2 s[88:89], s[0:1], 88
    s_lshl_b32 s92, s2, 2
    s_add_u32 s92, s92, s{swave}
    s_lshl_b32 s92, s92, 6
    s_add_u32 s92, s92, {STAMP_OFF + kidx * 262144}
    s_waitcnt lgkmcnt(0)
    s_mov_b32 s90, {256 << 20}
    s_mov_b32 s91, 0x00020000
    v_mov_b32 v{vt+16}, 0
    """)
    for i in range(16):
        a(f"v_mov_b32 v{vt+i}, s{64+i}")
    for i in range(4):
        a(f"buffer_store_dwordx4 v[{vt+4*i}:{vt+4*i+3}], v{vt+16}, s[88:91], s92 offen offset:{16*i}")
    a("s_waitcnt vmcnt(0)")
```

```python
import math
from asmlib import *
from sched import Stream
from kb import ACT_RG_BYTES, ACT_BYTES

KA_GRID = 256
KA_LDS = 163840
SLOT = 16544
GB = [0, 4128, 8320, 12448]
KB = KA_LDS - 4 * SLOT
WB, WSL = 16384, 32928
WG_OFF, WU_OFF = 16544, 24736
MF = "v_mfma_f32_16x16x32_bf16"

vQ, vS, vP, vC, vF, vL, vTS, vT = 0, 128, 160, 192, 208, 232, 236, 240
vKa, vVa, vDm = 248, 249, 250
vX0, vX1, vX2, vX3, vX4 = 251, 252, 253, 254, 255
SEQ = [0, 1, 2, 3, 4, 5] * 2 + [0, 1, 2, 3, 4] * 4
pF = 144
pXP = 164
pXO = 180
pD = 204
pA, pC, pB = 212, 214, 216
pXW, pXR = 224, 225
pR, pNM = 226, 228
pT = 230
aX = 96

SRD_K, SRD_V, SRD_WS, SRD_W, SRD_X = 12, 16, 20, 40, 44
sWv, sRG, sKH, sHD, sRB = 24, 25, 26, 27, 28
sT, sBase, sK0, sV0, sTmp, sLds, sCnt, sRet, sThr, sTV = 30, 31, 32, 33, 34, 35, 36, 37, 38, 39
sMa, sMb, sKs, sWst, sWtot, sWcol, sW, sXk = 48, 49, 50, 51, 52, 53, 54, 55
sM0 = 56
sC = 80


def Q(qb, s): return vQ + (qb * 8 + s) * 4
def S(kb, qb): return vS + (kb * 4 + qb) * 4
def P(par, qb): return vP + (par * 4 + qb) * 4
def C(qb): return vC + qb * 4
def O(qb, db): return (qb * 16 + db) * 4
def r4(f, r): return f"{f}[{r}:{r+3}]"
def KSL(p): return (1 - p) * 2 * SLOT
def VSL(p): return p * 2 * SLOT


class Cfg:
    LEAD = 16
    YP, XP, DW, DWK = 4, 68, 32, 32
    YP0 = 44
    pairwait = True
    no_dma = False
    no_sm = False
    no_bar = False
    stamps = False
    PBAR = 4
    PDW = 40
    p_nodma = False
    p_nonorm = False
    p_nobar = False
    smap = dict(start=0, gemm_end=1, loop0=2, loop1=3, attn_end=6)

    def st(self, key):
        if not self.stamps or key not in self.smap:
            return ""
        k = self.smap[key]
        return f"s_memrealtime s[{64+2*k}:{65+2*k}]"


def lanecalc(a, dst, l, terms, add=None, tmp=vX1, stmp=3):
    first = True
    for off, w, coef in terms:
        t = dst if first else tmp
        a(f"v_bfe_u32 v{t}, v{l}, {off}, {w}")
        if coef & (coef - 1) == 0:
            sh = coef.bit_length() - 1
            if first:
                if sh:
                    a(f"v_lshlrev_b32 v{dst}, {sh}, v{dst}")
            else:
                a(f"v_lshl_add_u32 v{dst}, v{t}, {sh}, v{dst}")
        else:
            a(f"s_mov_b32 s{stmp}, {coef}")
            if first:
                a(f"v_mul_u32_u24 v{dst}, s{stmp}, v{dst}")
            else:
                a(f"v_mad_u32_u24 v{dst}, v{t}, s{stmp}, v{dst}")
        first = False
    if add is not None:
        a(f"v_add_u32 v{dst}, {add}, v{dst}")


class Builder:
    def __init__(self, cfg, fbase, seq):
        self.cfg = cfg
        self.st = Stream()
        self.free = {}
        self.used = {}
        self.fid = 0
        self.minread = -10**9
        self.fbase = fbase
        self.seq = seq
        self.deferred = []

    def use(self, pos, u):
        g = math.ceil(pos)
        self.used[g] = self.used.get(g, 0) + u

    def add(self, pos, text, kind="x", fid=None, u=1):
        self.st.add(pos, text, kind, fid)
        self.use(pos, u)

    def frag(self, fc, reads, mfmas, extra_need=(), pair=None):
        st = self.st
        buf = self.seq[fc]
        fr = self.fbase + 4 * buf
        fid = self.fid
        self.fid += 1
        u = st.pos()
        pos = max(u - self.cfg.LEAD, self.free.get(buf, -10**9), self.minread)
        for i, rd in enumerate(reads):
            self.add(min(pos + i, u), rd(fr), "ds", fid if i == len(reads) - 1 else ("part", fid))
        if pair is None:
            pair = fc % 2 == 0
        for i, m in enumerate(mfmas):
            need = ()
            if i == 0:
                need = (fid,) + tuple(extra_need)
                if self.cfg.pairwait and pair:
                    need += (fid + 1,)
                if pair or not self.cfg.pairwait:
                    self.use(u, 1)
            st.mfma(m(fr), need)
        self.free[buf] = st.pos()

    def qk(self, kslot, fc0, cinit=True):
        for kb in range(2):
            for s in range(8):
                off = KSL(kslot) + 2048 * kb + 128 * s
                rd = [lambda fr, off=off: f"ds_read_b128 {r4('v', fr)}, v{vKa} offset:{off}"]
                ms = []
                for qb in range(4):
                    d = r4('v', S(kb, qb))
                    c = d if s else (r4('v', C(qb)) if cinit else "0")
                    ms.append(lambda fr, d=d, c=c, q=r4('v', Q(qb, s)): f"{MF} {d}, {r4('v', fr)}, {q}, {c}")
                self.frag(fc0 + kb * 8 + s, rd, ms)

    def pv(self, vslot, par, fc0, first=False):
        for db in range(16):
            off = VSL(vslot) + 128 * (db // 2) + 32 * (db % 2)
            rd = [lambda fr, off=off: f"ds_read_b64_tr_b16 v[{fr}:{fr+1}], v{vVa} offset:{off}",
                  lambda fr, off=off: f"ds_read_b64_tr_b16 v[{fr+2}:{fr+3}], v{vVa} offset:{off+2048}"]
            ms = []
            for qb in range(4):
                o = r4('a', O(qb, db))
                ms.append(lambda fr, o=o, p=r4('v', P(par, qb)): f"{MF} {o}, {r4('v', fr)}, {p}, {'0' if first else o}")
            self.frag(fc0 + db, rd, ms)

    def place(self, ops, start, end):
        g = start
        for op in ops:
            text, u, minpos = op[:3]
            kind, fid = op[3:] if len(op) > 3 else ("x", None)
            g = max(g, minpos)
            while self.used.get(g, 0) + u > 2 and g < end:
                g += 1
            self.add(g - 0.5, text, kind, fid, u)
        return g

    def finish(self, a):
        for ops, s0, s1 in self.deferred:
            self.place(ops, s0, s1)
        return self.st.emit(a)


def softmax_ops(par, kb, qb, tset):
    t = [vT + 4 * tset + i for i in range(4)]
    s = S(kb, qb)
    p = P(par, qb) + 2 * kb
    ex = [(f"v_exp_f32 v{t[i]}, v{s+i}", 2) for i in range(4)]
    rest = [(f"v_cvt_pk_bf16_f32 v{p}, v{t[0]}, v{t[1]}", 1),
            (f"v_add_f32 v{t[0]}, v{t[0]}, v{t[1]}", 1),
            (f"v_cvt_pk_bf16_f32 v{p+1}, v{t[2]}, v{t[3]}", 1),
            (f"v_add_f32 v{t[2]}, v{t[2]}, v{t[3]}", 1)]
    if kb == 0:
        rest.append((f"v_add_f32 v{vTS+qb}, v{t[0]}, v{t[2]}", 1))
    else:
        rest.append((f"v_add_f32 v{t[0]}, v{t[0]}, v{t[2]}", 1))
        rest.append((f"v_add_f32 v{vTS+qb}, v{vTS+qb}, v{t[0]}", 1))
    return ex, rest


def softmax_serial(a, par):
    for kb in range(2):
        for qb in range(4):
            ex, rest = softmax_ops(par, kb, qb, qb % 2)
            for t, _ in ex + rest:
                a(t)


def xreduce(a, op, t, u):
    a(f"""
    v_mov_b32 v{u}, v{t}
    v_permlane32_swap_b32 v{t}, v{u}
    {op} v{t}, v{t}, v{u}
    v_mov_b32 v{u}, v{t}
    v_permlane16_swap_b32 v{t}, v{u}
    {op} v{t}, v{t}, v{u}
    """)


def rowmax(a, qb, t, u):
    s0, s1 = S(0, qb), S(1, qb)
    a(f"""
    v_max3_f32 v{t}, v{s0}, v{s0+1}, v{s0+2}
    v_max3_f32 v{t}, v{t}, v{s0+3}, v{s1}
    v_max3_f32 v{t}, v{t}, v{s1+1}, v{s1+2}
    v_max_f32 v{t}, v{t}, v{s1+3}
    """)
    xreduce(a, "v_max_f32", t, u)


def dma_ops(kind, slot):
    st_, so, srd = (sT, sK0, SRD_K) if kind == "K" else (sTV, sV0, SRD_V)
    lb = KB + KSL(slot) if kind == "K" else VSL(slot)
    groups = []
    for gi in range(2):
        for t in range(4):
            txt = []
            if t == 0:
                txt.append(f"s_add_u32 m0, s{sLds}, {lb + gi*4128}")
                if gi:
                    txt.append(f"s_add_u32 s{so}, s{so}, 4096")
                else:
                    txt.append(f"s_add_u32 s{so}, s{st_}, s{sBase}")
            txt.append(f"buffer_load_dwordx4 v{vDm}, s[{srd}:{srd+3}], s{so} offen offset:{1024*t} lds")
            if gi == 0 and t == 1:
                txt.append(f"s_add_u32 s{st_}, s{st_}, 16384")
            if gi == 0 and t == 2:
                txt.append(f"s_and_b32 s{st_}, s{st_}, 0x7ffff")
            groups.append("\n".join(txt))
    return groups


def gen_attn(a, name, cfg):
    B = Builder(cfg, vF, SEQ)
    st = B.st
    issued = []

    def barrier(pos, need):
        w = ""
        if need is not None:
            n = 8 * (len(issued) - 1 - issued.index(need))
            w = f"s_waitcnt vmcnt({n})\n"
        B.add(pos - 0.2, w + ("s_nop 0" if cfg.no_bar else "s_barrier"), "x", u=2)
        B.minread = pos - 0.1

    def dma(kind, tile, slot, p0, p1):
        issued.append(f"{kind}{tile}")
        g = dma_ops(kind, slot)
        for i, txt in enumerate(g):
            if cfg.no_dma and tile > 2:
                continue
            pos = p0 + (p1 - p0) * i // 8
            B.add(pos - 0.3, txt, "x", None, u=txt.count("\n") + 1)

    B.minread = -0.5
    B.qk(0, 16, cinit=False)
    end = st.pos()
    barrier(6, None)
    dma("V", 0, 0, 7, 39)
    barrier(end, None)
    B.minread = -10**9
    dma("K", 2, 0, end + 0.22, end + 0.22)
    ini = Asm()
    for qb in range(4):
        rowmax(ini, qb, vTS + qb, vT + qb)
    for qb in range(4):
        for r in range(4):
            ini(f"v_sub_f32 v{C(qb)+r}, 0, v{vTS+qb}")
        for kb in range(2):
            for r in range(4):
                ini(f"v_sub_f32 v{S(kb,qb)+r}, v{S(kb,qb)+r}, v{vTS+qb}")
        ini(f"v_mov_b32 v{vL+qb}, 0")
    softmax_serial(ini, 0)
    if cfg.st("qk0"):
        st.add(end - 0.06, cfg.st("qk0") + "\ns_waitcnt lgkmcnt(0)", "waitall")
    st.add(end - 0.05, "\n".join(i.text for i in ini.items))
    if cfg.st("sm0"):
        st.add(end - 0.04, cfg.st("sm0") + "\ns_waitcnt lgkmcnt(0)", "waitall")

    def iteration(j, ret=None):
        par = j % 2
        qk = j < 31
        base = st.pos()
        end = base + (128 if qk else 64)
        lops = [(f"v_add_f32 v{vL+qb}, v{vL+qb}, v{vTS+qb}", 1, base + 1) for qb in range(4)]
        if qk:
            B.qk(1 - par, 0)
            barrier(base + cfg.YP, f"V{j}")
            dma("V", j + 1, 1 - par, base + cfg.YP + 1, base + cfg.YP + 1 + cfg.DW)
        B.pv(par, par, 16 if qk else 0, first=(j == 0))
        assert st.pos() == end
        if j <= 29:
            barrier(base + cfg.XP, f"K{j+2}")
        elif j == 30:
            barrier(base + 110, f"V31")
        if j <= 28:
            dma("K", j + 3, 1 - par, base + cfg.XP + 1, base + cfg.XP + 1 + cfg.DWK)
        B.deferred.append((lops, base + 1, base + 30))
        if qk:
            ops = []
            gi = 0
            pend = []
            for kb in range(2):
                for qb in range(4):
                    ex, rest = softmax_ops(1 - par, kb, qb, gi % 2)
                    rdy = base + 32 * kb + 28 + qb + 4
                    seq = []
                    for i, e in enumerate(ex):
                        seq.append((e[0], e[1], rdy))
                        take = pend[:2]
                        pend = pend[2:]
                        seq += take
                    seq += pend
                    ops += seq
                    pend = [(t, u, rdy) for t, u in rest]
                    gi += 1
            ops += pend
            ops += [(f"v_max3_f32 v{vT}, v{vTS}, v{vTS+1}, v{vTS+2}", 1, 0),
                    (f"v_max_f32 v{vT}, v{vT}, v{vTS+3}", 1, 0),
                    (f"v_cmp_lt_f32 vcc, s{sThr}, v{vT}", 1, 0)]
            if cfg.no_sm:
                ops = ops[-3:]
            B.deferred.append((ops, base + 32, end - 1))
            st.add(end - 0.05, f"s_mov_b32 s{sRet}, {ret}\ns_cbranch_vccnz {name}_slow\n{name}_ret{ret}:")

    iteration(0, ret=0)
    if cfg.st("loop0"):
        st.add(st.pos() - 0.011, "s_memrealtime s[68:69]\ns_memtime s[72:73]\ns_waitcnt lgkmcnt(0)")
    st.add(st.pos() - 0.01, "loop", "cut")
    st.add(st.pos() - 0.009, f"{name}_loop:")
    iteration(1, ret=1)
    iteration(2, ret=2)
    st.add(st.pos() - 0.02, f"s_sub_u32 s{sCnt}, s{sCnt}, 1\ns_cmp_lg_u32 s{sCnt}, 0\ns_cbranch_scc1 {name}_loop")
    st.add(st.pos() - 0.01, "loopend", "cut")
    if cfg.st("loop1"):
        st.add(st.pos() - 0.009, "s_memrealtime s[70:71]\ns_memtime s[74:75]\ns_waitcnt lgkmcnt(0)")
    for i, t in enumerate(issued):
        issued[i] = t[0] + str(int(t[1:]) + 26)
    for j in range(29, 32):
        iteration(j, ret=j - 26)
    cuts, out = B.finish(a)
    n0, n1 = len(cuts["loop"][1]), len(cuts["loopend"][1])
    assert n0 == n1, (cuts["loop"][1], cuts["loopend"][1])


def gen_slow(a, name):
    a(f"{name}_slow:")
    a("s_nop 7")
    a("s_nop 7")
    D = vTS
    for qb in range(4):
        rowmax(a, qb, D + qb, vT + qb)
    for qb in range(4):
        a(f"v_max_f32 v{D+qb}, 0, v{D+qb}")
        a(f"v_sub_f32 v{vX0+qb}, 0, v{D+qb}")
        a(f"v_exp_f32 v{vX0+qb}, v{vX0+qb}")
    for qb in range(4):
        a(f"v_mul_f32 v{vL+qb}, v{vL+qb}, v{vX0+qb}")
        for r in range(4):
            a(f"v_sub_f32 v{C(qb)+r}, v{C(qb)+r}, v{D+qb}")
        for kb in range(2):
            for r in range(4):
                a(f"v_sub_f32 v{S(kb,qb)+r}, v{S(kb,qb)+r}, v{D+qb}")
        for i0 in range(0, 64, 8):
            for i in range(8):
                a(f"v_accvgpr_read_b32 v{vT+i}, a{64*qb+i0+i}")
            for i in range(8):
                a(f"v_mul_f32 v{vT+i}, v{vT+i}, v{vX0+qb}")
            for i in range(8):
                a(f"v_accvgpr_write_b32 a{64*qb+i0+i}, v{vT+i}")
    a(f"s_bitcmp1_b32 s{sRet}, 0")
    a(f"s_cbranch_scc1 {name}_slow0")
    softmax_serial(a, 1)
    a("s_nop 1")
    a(f"s_cmp_eq_u32 s{sRet}, 0")
    a(f"s_cbranch_scc1 {name}_ret0")
    a(f"s_cmp_eq_u32 s{sRet}, 2")
    a(f"s_cbranch_scc1 {name}_ret2")
    a(f"s_branch {name}_ret4")
    a(f"{name}_slow0:")
    softmax_serial(a, 0)
    a("s_nop 1")
    a(f"s_cmp_eq_u32 s{sRet}, 1")
    a(f"s_cbranch_scc1 {name}_ret1")
    a(f"s_branch {name}_ret3")


def srd(a, r, lo, hi, nrec):
    a(f"s_mov_b32 s{r}, s{lo}\ns_mov_b32 s{r+1}, s{hi}\ns_mov_b32 s{r+2}, {nrec}\ns_mov_b32 s{r+3}, 0x00020000")


def gen_setup(a, name, cfg):
    l = vX4
    a(f"""
    s_cmp_ge_u32 s2, {KA_GRID}
    s_cbranch_scc1 {name}_end
    s_load_dwordx8 s[4:11], s[0:1], 0
    s_load_dwordx4 s[80:83], s[0:1], 48
    s_load_dwordx2 s[84:85], s[0:1], 88
    """)
    a(cfg.st("start"))
    a(f"""
    v_lshrrev_b32 v{vX0}, 6, v0
    v_and_b32 v{l}, 63, v0
    s_and_b32 s29, s2, 7
    v_readfirstlane_b32 s{sWv}, v{vX0}
    s_lshr_b32 s{sT}, s2, 3
    s_lshr_b32 s{sHD}, s{sT}, 4
    s_lshl_b32 s3, s29, 1
    s_add_u32 s{sHD}, s{sHD}, s3
    s_and_b32 s{sRB}, s{sT}, 15
    s_lshr_b32 s{sRG}, s{sWv}, 1
    s_and_b32 s{sKH}, s{sWv}, 1
    s_lshl_b32 s{sT}, s{sT}, 14
    s_mov_b32 s{sTV}, s{sT}
    s_lshl_b32 s{sBase}, s{sKH}, 19
    s_lshl_b32 s3, s{sRG}, 13
    s_add_u32 s{sBase}, s{sBase}, s3
    s_mul_i32 s{sLds}, s{sKH}, {SLOT}
    s_mul_i32 s3, s{sRG}, 8320
    s_add_u32 s{sLds}, s{sLds}, s3
    s_mov_b32 s{sThr}, 0x5f800000
    s_mov_b32 s{sCnt}, 14
    s_lshl_b32 s29, s29, 20
    s_sub_u32 s{sXk}, s{sRB}, 14
    s_cmp_ge_u32 s{sRB}, 14
    s_cselect_b32 s{sXk}, s{sXk}, s{sRB}
    """)
    a(f"""
    s_lshl_b32 s3, s{sRB}, 7
    s_lshl_b32 s{sTmp}, s{sWv}, 5
    s_add_u32 s{sTmp}, s{sTmp}, s3
    s_mul_i32 s{sTmp}, s{sTmp}, 896
    """)
    lanecalc(a, pT, l, [(0, 4, 896), (4, 2, 16)], add=f"s{sTmp}")
    a(f"v_add_u32 v{pT+1}, {16*896}, v{pT}")
    a(f"""
    s_lshl_b32 s{sTmp}, s{sXk}, 6
    s_waitcnt lgkmcnt(0)
    """)
    a(cfg.st("karg"))
    srd(a, SRD_X, 4, 5, 2048 * 896)
    for i in range(14):
        for qb in range(2):
            r = aX + (qb * 14 + i) * 4
            a(f"buffer_load_dwordx4 a[{r}:{r+3}], v{pT+qb}, s[{SRD_X}:{SRD_X+3}], s{sTmp} offen")
        if i < 13:
            a(f"""
            s_add_u32 s{sTmp}, s{sTmp}, 64
            s_cmp_eq_u32 s{sTmp}, 896
            s_cselect_b32 s{sTmp}, 0, s{sTmp}
            """)
    a(f"""
    s_cmp_ge_u32 s{sWv}, 2
    s_cbranch_scc1 {name}_wmlp
    """)
    srd(a, SRD_W, 10, 11, 448 * 8192)
    a(f"""
    s_mul_i32 s{sMa}, s{sWv}, 8320
    s_add_u32 s{sMb}, s{sMa}, 4128
    s_mov_b32 s{sWst}, {32*8192}
    s_mov_b32 s{sWtot}, {14*32*8192}
    s_lshl_b32 s{sWcol}, s{sHD}, 9
    s_lshl_b32 s3, s{sWv}, 16
    s_add_u32 s{sWcol}, s{sWcol}, s3
    """)
    lanecalc(a, pD, l, [(2, 1, 8192), (3, 3, 64), (0, 2, 16)])
    for i in range(1, 8):
        gi, t = i // 4, i % 4
        a(f"v_add_u32 v{pD+i}, {(16*(t//2) + 4*(t%2) + 2*gi)*8192 - 1024*t}, v{pD}")
    a(f"""
    s_branch {name}_wdone
    {name}_wmlp:
    s_cmp_eq_u32 s{sWv}, 2
    s_cselect_b32 s{SRD_W}, s80, s82
    s_cselect_b32 s{SRD_W+1}, s81, s83
    s_mov_b32 s{SRD_W+2}, {448*3584}
    s_mov_b32 s{SRD_W+3}, 0x00020000
    s_cselect_b32 s{sMa}, {WG_OFF}, s{sMa}
    s_cselect_b32 s{sMa}, s{sMa}, {WU_OFF}
    s_add_u32 s{sMb}, s{sMa}, 4096
    s_mov_b32 s{sWst}, {32*3584}
    s_mov_b32 s{sWtot}, {14*32*3584}
    s_mul_i32 s{sWcol}, s{sHD}, 224
    s_movk_i32 s86, 4682
    """)
    for i in range(7):
        e, pos = vX0, vX2
        a(f"""
        v_add_u32 v{e}, {64*i}, v{l}
        v_mul_u32_u24 v{pos}, s86, v{e}
        v_lshrrev_b32 v{pos}, 16, v{pos}
        v_mul_u32_u24 v{vX3}, 14, v{pos}
        v_sub_u32 v{e}, v{e}, v{vX3}
        """)
        lanecalc(a, pD + i, pos, [(0, 2, 3584), (2, 1, 8 * 3584), (3, 1, 4 * 3584), (4, 1, 16 * 3584)])
        a(f"v_lshl_add_u32 v{pD+i}, v{e}, 4, v{pD+i}")
        if i % 4:
            a(f"v_subrev_u32 v{pD+i}, {1024*(i%4)}, v{pD+i}")
    a(f"""
    v_mov_b32 v{pD+7}, 0x4000000
    {name}_wdone:
    s_mul_i32 s{sKs}, s{sXk}, s{sWst}
    """)
    for k in range(4):
        for g in wdma_ops((13 - k) % 4):
            a(g)
    a(f"""
    s_add_u32 s{SRD_K}, s6, s29
    s_addc_u32 s{SRD_K+1}, s7, 0
    s_mov_b32 s{SRD_K+2}, 0x100000
    s_mov_b32 s{SRD_K+3}, 0x00020000
    s_add_u32 s{SRD_V}, s8, s29
    s_addc_u32 s{SRD_V+1}, s9, 0
    s_mov_b32 s{SRD_V+2}, 0x100000
    s_mov_b32 s{SRD_V+3}, 0x00020000
    """)
    srd(a, SRD_WS, 84, 85, 64 << 20)
    lanecalc(a, vDm, l, [(2, 1, 512), (3, 3, 64), (0, 2, 16)])
    a(f"s_mul_i32 s{sTmp}, s{sKH}, {SLOT}")
    lanecalc(a, vVa, l, [(3, 1, 4128), (4, 1, 8320), (5, 1, 1024), (2, 1, 64), (0, 2, 8)], add=f"s{sTmp}")
    a(f"s_add_u32 s{sTmp}, s{sTmp}, {KB}")
    lanecalc(a, vKa, l, [(1, 1, 4128), (2, 1, 8320), (3, 1, 1024), (0, 1, 64), (4, 2, 16)], add=f"s{sTmp}")
    LQ, LG = vX2, vX3
    lanecalc(a, LQ, l, [(3, 1, 4128), (4, 1, 8320), (5, 1, 2048), (2, 1, 64), (0, 2, 8)], add=WB)
    lanecalc(a, LG, l, [(2, 2, 224), (4, 1, 896), (5, 1, 3584), (0, 2, 8)], add=WB)
    a(f"""
    s_lshl_b32 s3, s{sKH}, 9
    v_add_u32 v{pA}, s3, v{LQ}
    s_lshl_b32 s3, s{sKH}, 7
    v_add_u32 v{pC}, s3, v{LG}
    s_cmp_eq_u32 s{sKH}, 0
    s_cbranch_scc1 {name}_b0
    v_add_u32 v{pB}, {128*3+32}, v{LQ}
    v_add_u32 v{pB+1}, {128*3+32+1024}, v{LQ}
    v_add_u32 v{pB+2}, {128*7+32}, v{LQ}
    v_add_u32 v{pB+3}, {128*7+32+1024}, v{LQ}
    s_branch {name}_b1
    {name}_b0:
    v_add_u32 v{pB}, {WG_OFF+96}, v{LG}
    v_add_u32 v{pB+1}, {WG_OFF+96+1792}, v{LG}
    v_add_u32 v{pB+2}, {WU_OFF+96}, v{LG}
    v_add_u32 v{pB+3}, {WU_OFF+96+1792}, v{LG}
    {name}_b1:
    v_add_u32 v{pA+1}, {2*WSL}, v{pA}
    v_add_u32 v{pC+1}, {2*WSL}, v{pC}
    """)
    for i in range(4):
        a(f"v_add_u32 v{pB+4+i}, {2*WSL}, v{pB+i}")
    a(f"""
    s_lshl_b32 s3, s{sWv}, 11
    v_lshlrev_b32 v{vX0}, 4, v{l}
    v_add_u32 v{pXW}, s3, v{vX0}
    s_xor_b32 s3, s3, 0x800
    v_add_u32 v{pXR}, s3, v{vX0}
    """)


def wdma_ops(slot):
    groups = []
    for i in range(8):
        gi, t = i // 4, i % 4
        txt = []
        if t == 0:
            txt.append(f"s_add_u32 m0, s{sMb if gi else sMa}, {WB + slot*WSL}")
            if gi == 0:
                txt.append(f"s_add_u32 s{sW}, s{sKs}, s{sWcol}")
            else:
                txt.append("s_nop 0")
        txt.append(f"buffer_load_dwordx4 v{pD+i}, s[{SRD_W}:{SRD_W+3}], s{sW} offen offset:{1024*t} lds")
        if i == 1:
            txt.append(f"s_add_u32 s{sKs}, s{sKs}, s{sWst}")
        if i == 2:
            txt.append(f"s_cmp_eq_u32 s{sKs}, s{sWtot}\ns_cselect_b32 s{sKs}, 0, s{sKs}")
        groups.append("\n".join(txt))
    return groups


def bf16r(a, v, t):
    a(f"v_cvt_pk_bf16_f32 v{t}, v{v}, v{v}\nv_lshlrev_b32 v{v}, 16, v{t}")


def norm_ops(i):
    ops = []
    for qb in range(2):
        for r in range(4):
            src = aX + (qb * 14 + i) * 4 + r
            t = pT + 3 * ((qb * 4 + r) % 4)
            dst = pXO + (i % 3) * 8 + qb * 4 + r
            ops += [(f"v_accvgpr_read_b32 v{t}, a{src}", 1, 0),
                    (f"v_lshlrev_b32 v{t+1}, 16, v{t}", 1, 0),
                    (f"v_and_b32 v{t+2}, s{sC}, v{t}", 1, 0),
                    (f"v_fma_f32 v{t+1}, v{t+1}, v{pR+qb}, v{pNM+qb}", 1, 0),
                    (f"v_fma_f32 v{t+2}, v{t+2}, v{pR+qb}, v{pNM+qb}", 1, 0),
                    (f"v_cvt_pk_bf16_f32 v{dst}, v{t+1}, v{t+2}", 1, 0)]
        d = pXO + (i % 3) * 8 + qb * 4
        ops.append((f"ds_write_b128 v{pXW}, {r4('v', d)} offset:{(i%2)*8192 + qb*1024}", 1, 0, "ds", ("xw", i, qb)))
    return ops


def xread_ops(i):
    return [(f"ds_read_b128 {r4('v', pXP + (i%2)*8 + qb*4)}, v{pXR} offset:{(i%2)*8192 + qb*1024}", 1, 0, "ds", ("xr", i, qb)) for qb in range(2)]


def gen_prologue(a, name, cfg):
    l = vX4
    ones, D1, D2 = 0, 4, 12
    a(f"s_mov_b32 s{sC}, 0xffff0000")
    for r in range(4):
        a(f"v_mov_b32 v{ones+r}, 0x3f803f80")
    a(f"""
    v_lshrrev_b32 v{vX0}, 4, v{l}
    v_lshlrev_b32 v{vX0}, 2, v{vX0}
    v_and_b32 v{vX1}, 15, v{l}
    v_sub_u32 v{vX0}, v{vX1}, v{vX0}
    """)
    for r in range(4):
        a(f"v_cmp_eq_u32 s[{sM0+2*r}:{sM0+2*r+1}], {r}, v{vX0}")
    for i in range(14):
        a(f"s_waitcnt vmcnt({32 + 2*(13-i)})")
        for qb in range(2):
            x = r4('a', aX + (qb * 14 + i) * 4)
            d1, d2 = r4('v', D1 + 4 * qb), r4('v', D2 + 4 * qb)
            a(f"{MF} {d1}, {r4('v', ones)}, {x}, {d1 if i else '0'}")
            a(f"{MF} {d2}, {x}, {x}, {d2 if i else '0'}")
    a(cfg.st("stats"))
    a("s_mov_b32 s3, 0x3b124925")
    a("s_mov_b32 s86, 0x3727c5ac")
    for qb in range(2):
        t, u, m = pT + 4 * qb, pT + 4 * qb + 1, pT + 4 * qb + 2
        a(f"v_cndmask_b32 v{t}, 0, v{D2+4*qb}, s[{sM0}:{sM0+1}]")
        for r in range(1, 4):
            a(f"v_cndmask_b32 v{t}, v{t}, v{D2+4*qb+r}, s[{sM0+2*r}:{sM0+2*r+1}]")
        xreduce(a, "v_add_f32", t, u)
        a(f"""
        v_mul_f32 v{m}, s3, v{D1+4*qb}
        v_mul_f32 v{t}, s3, v{t}
        v_fma_f32 v{t}, -v{m}, v{m}, v{t}
        v_max_f32 v{t}, 0, v{t}
        """)
        bf16r(a, m, u)
        bf16r(a, t, u)
        a(f"v_add_f32 v{t}, s86, v{t}")
        bf16r(a, t, u)
        a(f"v_sqrt_f32 v{t}, v{t}")
        bf16r(a, t, u)
        a(f"""
        v_rcp_f32 v{pR+qb}, v{t}
        v_mul_f32 v{pNM+qb}, v{m}, v{pR+qb}
        v_sub_f32 v{pNM+qb}, 0, v{pNM+qb}
        """)
    for i in range(2):
        for op in norm_ops(i):
            a(op[0])
    a("s_waitcnt vmcnt(24) lgkmcnt(0)\ns_barrier")
    for i in range(2):
        for op in xread_ops(i):
            a(op[0])
    a(cfg.st("gemm0"))
    a("s_waitcnt lgkmcnt(0)")

    B = Builder(cfg, pF, [0, 1, 2, 3, 4] * 3)
    st = B.st
    issued = ["W0", "W1", "W2", "W3"]
    B.minread = -0.5
    for i in range(14):
        base = st.pos()
        if cfg.st(f"k{i}"):
            B.add(base - 0.01, cfg.st(f"k{i}") + "\ns_waitcnt lgkmcnt(0)", "waitall")
        slot = (13 - i) % 4
        h, so = slot // 2, (slot % 2) * WSL
        bop = [r4('v', pXO + (i % 3) * 8), r4('v', pXO + (i % 3) * 8 + 4), r4('v', pXP + (i % 2) * 8), r4('v', pXP + (i % 2) * 8 + 4)]
        for f in range(15):
            if f < 7:
                ad = [(pA + h, so + 128 * (f // 2) + 32 * (f % 2) + 1024 * hf) for hf in range(2)]
                acc = lambda qb, f=f: r4('v', (f * 4 + qb) * 4)
            elif f < 9:
                ad = [(pB + 4 * h + 2 * (f - 7) + hf, so) for hf in range(2)]
                acc = lambda qb, f=f: r4('v', (f * 4 + qb) * 4)
            else:
                c = f - 9
                ad = [(pC + h, so + (WU_OFF if c % 2 else WG_OFF) + 32 * (c // 2) + 1792 * hf) for hf in range(2)]
                acc = lambda qb, c=c: r4('a', (c * 4 + qb) * 4)
            rd = [lambda fr, x=ad[0]: f"ds_read_b64_tr_b16 v[{fr}:{fr+1}], v{x[0]} offset:{x[1]}",
                  lambda fr, x=ad[1]: f"ds_read_b64_tr_b16 v[{fr+2}:{fr+3}], v{x[0]} offset:{x[1]}"]
            ms = [lambda fr, qb=qb, acc=acc: f"{MF} {acc(qb)}, {r4('v', fr)}, {bop[qb]}, {acc(qb) if i else '0'}" for qb in range(4)]
            B.frag(f, rd, ms, extra_need=([("xr", i, 0), ("xr", i, 1)] if f == 0 else ()), pair=(f % 2 == 0 and f < 14) or f == 14 and False)
        bp = base + cfg.PBAR
        if i < 13:
            n = 8 * (len(issued) - 1 - issued.index(f"W{i+1}"))
            if "PF" in issued[issued.index(f"W{i+1}"):]:
                n -= 7
            B.add(bp - 0.2, f"s_waitcnt vmcnt({n})\n" + ("s_nop 0" if cfg.p_nobar else "s_barrier"), "need", [("xw", i + 1, 0), ("xw", i + 1, 1)], u=3)
            B.minread = bp - 0.1
            g = []
            if 1 <= i <= 10:
                issued.append(f"W{i+3}")
                g = wdma_ops((13 - (i + 3)) % 4)
                if cfg.p_nodma:
                    g = []
            elif i == 11:
                issued.append("K0")
                g = dma_ops("K", 0)
                issued.append("PF")
                g.append(f"v_lshlrev_b32 v{vX0}, 7, v{l}\ns_add_u32 s{sV0}, s{sTV}, s{sBase}\nbuffer_load_dword v247, v{vX0}, s[{SRD_V}:{SRD_V+3}], s{sV0} offen")
            elif i == 12:
                issued.append("K1")
                g = dma_ops("K", 1)
            for n_, txt in enumerate(g):
                B.add(bp + 1 + cfg.PDW * n_ // 8 - 0.3, txt, "x", None, u=txt.count("\n") + 1)
        ops = []
        if 1 <= i < 13:
            ops += xread_ops(i + 1)
        if i + 2 < 14:
            ops += [o for o in norm_ops(i + 2) if not cfg.p_nonorm or o[0].startswith("ds_")]
        B.deferred.append((ops, bp + 1, base + 59))
    B.finish(a)
    a(cfg.st("gemm_end"))
    a(f"""
    s_mov_b32 s{sC+1}, 0x3db8aa3b
    s_lshl_b32 s3, s{sRG}, 15
    s_lshl_b32 s{sTmp}, s{sKH}, 14
    s_add_u32 s3, s3, s{sTmp}
    s_xor_b32 s{sTmp}, s3, 0x4000
    v_lshlrev_b32 v{vX0}, 4, v{l}
    v_add_u32 v{pXR}, s3, v{vX0}
    v_add_u32 v{pXW}, s{sTmp}, v{vX0}
    """)
    W0, W1, W2, W3 = pA, pA + 1, pC, pC + 1
    lanecalc(a, vX0, l, [(5, 1, 256), (0, 4, 16), (4, 1, 8)], stmp=86)
    a(f"""
    v_add_u32 v{W2}, s3, v{vX0}
    v_add_u32 v{W3}, s{sTmp}, v{vX0}
    s_lshl_b32 s3, s{sKH}, 12
    v_add_u32 v{W0}, s3, v{W2}
    v_add_u32 v{W1}, s3, v{W3}
    s_waitcnt vmcnt(0)
    s_barrier
    """)

    def qpost(f, wa, boff):
        for qb in range(4):
            r = (f * 4 + qb) * 4
            for k in range(4):
                a(f"v_mul_f32 v{r+k}, s{sC+1}, v{r+k}")
            a(f"v_cvt_pk_bf16_f32 v{r}, v{r}, v{r+1}")
            a(f"v_cvt_pk_bf16_f32 v{r+1}, v{r+2}, v{r+3}")
            a(f"ds_write_b64 v{wa[qb//2]}, v[{r}:{r+1}] offset:{(qb%2)*8192 + boff}")

    for f in range(7):
        qpost(f, (W0, W1), (f // 2) * 1024 + 512 * (f % 2))
    sH0, sH1, sGb = sMa, sMb, sKs
    a(f"""
    s_lshl_b32 s3, s{sRB}, 1
    s_add_u32 s3, s3, s{sRG}
    s_mul_i32 s3, s3, {ACT_RG_BYTES}
    s_add_u32 s3, s3, {128*4096}
    s_lshl_b32 s{sTmp}, s{sKH}, 11
    s_add_u32 s{sH0}, s3, s{sTmp}
    s_xor_b32 s{sTmp}, s{sTmp}, 0x800
    s_add_u32 s{sH1}, s3, s{sTmp}
    s_mul_i32 s{sGb}, s{sHD}, 7
    s_mov_b32 s{sC+2}, 0xc0135761
    s_mov_b32 s{sC+3}, 0xbdd2d3e8
    v_mov_b32 v{pB}, s{sC+2}
    v_lshlrev_b32 v{pB+1}, 4, v{l}
    """)

    def hpost(gsrc, usrc, fb_expr):
        a(fb_expr)
        a(f"""
        s_lshr_b32 s{sTmp}, s3, 1
        s_lshl_b32 s{sTmp}, s{sTmp}, 12
        s_and_b32 s3, s3, 1
        s_lshl_b32 s3, s3, 3
        s_add_u32 s{sTmp}, s{sTmp}, s3
        s_add_u32 s{sW}, s{sTmp}, s{sH0}
        s_add_u32 s{sWcol}, s{sTmp}, s{sH1}
        """)
        for qb in range(4):
            gf, gr = gsrc(qb)
            uf, ur = usrc(qb)
            T = pF + 12 * (qb % 2) * 2
            if gf == 'a':
                for k in range(4):
                    a(f"v_accvgpr_read_b32 v{T+k}, a{gr+k}")
                    a(f"v_accvgpr_read_b32 v{T+4+k}, a{ur+k}")
                gr, ur = T, T + 4
            Z = T + 8
            for k in range(4):
                a(f"v_mul_f32 v{Z+k}, v{gr+k}, v{gr+k}")
            for k in range(4):
                a(f"v_fma_f32 v{Z+k}, v{Z+k}, s{sC+3}, v{pB}")
            for k in range(4):
                a(f"v_mul_f32 v{Z+k}, v{Z+k}, v{gr+k}")
            for k in range(4):
                a(f"v_exp_f32 v{Z+k}, v{Z+k}")
            for k in range(4):
                a(f"v_mul_f32 v{ur+k}, v{ur+k}, v{gr+k}")
            for k in range(4):
                a(f"v_add_f32 v{Z+k}, 1.0, v{Z+k}")
            for k in range(4):
                a(f"v_rcp_f32 v{Z+k}, v{Z+k}")
            for k in range(4):
                a(f"v_mul_f32 v{Z+k}, v{Z+k}, v{ur+k}")
            a(f"v_cvt_pk_bf16_f32 v{Z+4}, v{Z}, v{Z+1}")
            a(f"v_cvt_pk_bf16_f32 v{Z+5}, v{Z+2}, v{Z+3}")
            a(f"buffer_store_dwordx2 v[{Z+4}:{Z+5}], v{pB+1}, s[{SRD_WS}:{SRD_WS+3}], s{sW if qb < 2 else sWcol} offen offset:{1024*(qb%2)}")

    a(f"s_cmp_eq_u32 s{sKH}, 0\ns_cbranch_scc1 {name}_pb0")
    qpost(7, (W2, W3), 3 * 1024 + 512)
    qpost(8, (W2, W3), 7 * 1024 + 512)
    a(f"s_branch {name}_pb1\n{name}_pb0:")
    hpost(lambda qb: ('v', (7 * 4 + qb) * 4), lambda qb: ('v', (8 * 4 + qb) * 4), f"s_add_u32 s3, s{sGb}, 3")
    a(f"{name}_pb1:")
    a(cfg.st("qw"))
    a("s_waitcnt lgkmcnt(0)\ns_barrier")
    for qb in range(4):
        for s in range(8):
            a(f"ds_read_b128 {r4('v', Q(qb, s))}, v{pXR if qb < 2 else pXW} offset:{(qb%2)*8192 + s*1024}")
    for f in range(3):
        hpost(lambda qb: ('a', ((2 * f) * 4 + qb) * 4), lambda qb: ('a', ((2 * f + 1) * 4 + qb) * 4),
              f"s_lshl_b32 s3, s{sKH}, 2\ns_add_u32 s3, s3, s{sGb}\ns_add_u32 s3, s3, {f}")
    a(cfg.st("pro_end"))
    a("s_waitcnt lgkmcnt(0)")


def gen_epilogue(a, name):
    l = vX4
    T = vS
    for qb in range(4):
        xreduce(a, "v_add_f32", vL + qb, vT + qb)
    a(f"""
    v_lshlrev_b32 v{vX0}, 4, v{l}
    s_lshl_b32 s3, s{sWv}, 15
    v_add_u32 v{vX1}, s3, v{vX0}
    s_xor_b32 s3, s3, 0x8000
    v_add_u32 v{vX2}, s3, v{vX0}
    s_waitcnt lgkmcnt(0)
    s_barrier
    v_mov_b32 v{T}, v{C(2)}
    v_mov_b32 v{T+1}, v{vL+2}
    v_mov_b32 v{T+2}, v{C(3)}
    v_mov_b32 v{T+3}, v{vL+3}
    s_lshl_b32 s3, s{sWv}, 10
    s_add_u32 s3, s3, 131072
    v_add_u32 v{vX3}, s3, v{vX0}
    ds_write_b128 v{vX3}, v[{T}:{T+3}]
    s_xor_b32 s3, s3, 0x400
    v_add_u32 v{vX3}, s3, v{vX0}
    """)
    for i in range(32):
        a(f"ds_write_b128 v{vX1}, a[{128+4*i}:{128+4*i+3}] offset:{1024*i}")
    a(f"""
    s_waitcnt lgkmcnt(0)
    s_barrier
    ds_read_b128 v[{T}:{T+3}], v{vX3}
    """)
    R = 0
    for i in range(14):
        a(f"ds_read_b128 v[{R+4*i}:{R+4*i+3}], v{vX2} offset:{1024*i}")
    a("s_waitcnt lgkmcnt(14)")
    FA, FB = vT, vT + 2
    for qb in range(2):
        cB, lB = T + 2 * qb, T + 2 * qb + 1
        a(f"""
        v_min_f32 v{T+8}, v{C(qb)}, v{cB}
        v_sub_f32 v{FA+qb}, v{T+8}, v{C(qb)}
        v_sub_f32 v{FB+qb}, v{T+8}, v{cB}
        v_exp_f32 v{FA+qb}, v{FA+qb}
        v_exp_f32 v{FB+qb}, v{FB+qb}
        v_mul_f32 v{T+9}, v{FA+qb}, v{vL+qb}
        v_fma_f32 v{T+9}, v{FB+qb}, v{lB}, v{T+9}
        v_rcp_f32 v{T+9}, v{T+9}
        v_mul_f32 v{FA+qb}, v{FA+qb}, v{T+9}
        v_mul_f32 v{FB+qb}, v{FB+qb}, v{T+9}
        """)
    a(f"""
    s_lshl_b32 s3, s{sRB}, 1
    s_add_u32 s3, s3, s{sRG}
    s_mul_i32 s3, s3, {ACT_RG_BYTES}
    s_lshl_b32 s10, s{sHD}, 15
    s_add_u32 s3, s3, s10
    s_lshl_b32 s10, s{sKH}, 11
    s_add_u32 s3, s3, s10
    """)
    nread = 14
    W = vS + 16
    for qb in range(2):
        for sg in range(8):
            i0 = (qb * 16 + 2 * sg)
            a(f"s_waitcnt lgkmcnt({max(nread - (i0 + 2), 0)})")
            w = W + 16 * (sg % 2)
            for k in range(8):
                a(f"v_accvgpr_read_b32 v{w+k}, a{4*i0+k}")
            for k in range(8):
                a(f"v_mul_f32 v{R+4*i0+k}, v{FB+qb}, v{R+4*i0+k}")
            for k in range(8):
                a(f"v_fma_f32 v{w+k}, v{w+k}, v{FA+qb}, v{R+4*i0+k}")
            for k in range(4):
                a(f"v_cvt_pk_bf16_f32 v{w+8+k}, v{w+2*k}, v{w+2*k+1}")
            for _ in range(2):
                if nread < 32:
                    a(f"ds_read_b128 v[{R+4*nread}:{R+4*nread+3}], v{vX2} offset:{1024*nread}")
                    nread += 1
            a(f"s_add_u32 s10, s3, {4096*sg}")
            a(f"buffer_store_dwordx4 v[{w+8}:{w+11}], v{vX0}, s[{SRD_WS}:{SRD_WS+3}], s10 offen offset:{1024*qb}")


def gen_ka(name="ka_kernel", stampk=None, cfg=None):
    cfg = cfg or Cfg()
    cfg.stamps = stampk is not None
    a = Asm()
    gen_setup(a, name, cfg)
    gen_prologue(a, name, cfg)
    gen_attn(a, name, cfg)
    a(cfg.st("attn_end"))
    gen_epilogue(a, name)
    if cfg.stamps:
        stamp_end(a, stampk, 128, sWv)
    a(f"s_endpgm")
    gen_slow(a, name)
    a(f"{name}_end:\ns_endpgm")
    p = a.padded()
    items = p.items
    i0 = items.index(f"{name}_loop:")
    i1 = max(i for i, it in enumerate(items) if not isinstance(it, str) and it.text.endswith(f"{name}_loop"))
    sp = seam_pad(items[i0:i1 + 1])
    assert sp <= 0, sp
    return kernel_header(name) + p.text(), kernel_desc(name, 512, 256)


if __name__ == "__main__":
    t, d = gen_ka()
    open("ka.txt", "w").write(t)
```

```python
import math
from asmlib import *
from sched import Stream
HWS_RG = 56 * 4096
PART = 8 << 20

KA_GRID = 256
KA_LDS = 163840
SLOT = 16544
GB = [0, 4128, 8320, 12448]
KB = KA_LDS - 4 * SLOT
WB, WSL = 16384, 32928
WG_OFF, WU_OFF = 16544, 24736
MF = "v_mfma_f32_16x16x32_bf16"

vQ, vS, vP, vC, vF, vL, vTS, vT = 0, 128, 160, 192, 208, 232, 236, 240
vKa, vVa, vDm = 248, 249, 250
vX0, vX1, vX2, vX3, vX4 = 251, 252, 253, 254, 255
SEQ = [0, 1, 2, 3, 4, 5] * 2 + [0, 1, 2, 3, 4] * 4
pF = 144
pXP = 164
pXO = 180
pD = 204
pA, pC, pB = 212, 214, 216
pXW, pXR = 224, 225
pR, pNM = 226, 228
pT = 230
aX = 0
aH = 128

SRD_K, SRD_V, SRD_WS, SRD_W, SRD_X = 12, 16, 20, 40, 44
sWv, sRG, sKH, sHD, sRB = 24, 25, 26, 27, 28
sT, sBase, sK0, sV0, sTmp, sLds, sCnt, sRet, sThr, sTV = 30, 31, 32, 33, 34, 35, 36, 37, 38, 39
sMa, sMb, sKs, sWst, sWtot, sWcol, sW, sXk = 48, 49, 50, 51, 52, 53, 54, 55
sM0 = 56
sC = 80


def Q(qb, s): return vQ + (qb * 8 + s) * 4
def S(kb, qb): return vS + (kb * 4 + qb) * 4
def P(par, qb): return vP + (par * 4 + qb) * 4
def C(qb): return vC + qb * 4
def O(qb, db): return (qb * 16 + db) * 4
def OF(qb): return 'v' if qb < 2 else 'a'
def r4(f, r): return f"{f}[{r}:{r+3}]"
def KSL(p): return (1 - p) * 2 * SLOT
def VSL(p): return p * 2 * SLOT


class Cfg:
    LEAD = 16
    YP, XP, DW, DWK = 4, 68, 32, 32
    YP0 = 44
    pairwait = True
    no_dma = False
    no_sm = False
    no_bar = False
    stamps = False
    PBAR = 4
    B0 = 22
    ELAG = 4
    ERD = 1.25
    stmod = ' sc1'
    hmod = ''
    l2pf = False
    l2e = (31, 31, 31)
    PDW = 40
    p_nodma = False
    p_nonorm = False
    p_nobar = False
    smap = dict(start=0, gemm_end=1, loop0=2, loop1=3, attn_end=6)

    def st(self, key):
        if not self.stamps or key not in self.smap:
            return ""
        k = self.smap[key]
        return f"s_memrealtime s[{64+2*k}:{65+2*k}]"


def lanecalc(a, dst, l, terms, add=None, tmp=vX1, stmp=3):
    first = True
    for off, w, coef in terms:
        t = dst if first else tmp
        a(f"v_bfe_u32 v{t}, v{l}, {off}, {w}")
        if coef & (coef - 1) == 0:
            sh = coef.bit_length() - 1
            if first:
                if sh:
                    a(f"v_lshlrev_b32 v{dst}, {sh}, v{dst}")
            else:
                a(f"v_lshl_add_u32 v{dst}, v{t}, {sh}, v{dst}")
        else:
            a(f"s_mov_b32 s{stmp}, {coef}")
            if first:
                a(f"v_mul_u32_u24 v{dst}, s{stmp}, v{dst}")
            else:
                a(f"v_mad_u32_u24 v{dst}, v{t}, s{stmp}, v{dst}")
        first = False
    if add is not None:
        a(f"v_add_u32 v{dst}, {add}, v{dst}")


class Builder:
    def __init__(self, cfg, fbase, seq):
        self.cfg = cfg
        self.st = Stream()
        self.free = {}
        self.used = {}
        self.fid = 0
        self.minread = -10**9
        self.fbase = fbase
        self.seq = seq
        self.deferred = []

    def use(self, pos, u):
        g = math.ceil(pos)
        self.used[g] = self.used.get(g, 0) + u

    def add(self, pos, text, kind="x", fid=None, u=1):
        self.st.add(pos, text, kind, fid)
        self.use(pos, u)

    def frag(self, fc, reads, mfmas, extra_need=(), pair=None, lead=None):
        st = self.st
        buf = self.seq[fc]
        fr = self.fbase + 4 * buf
        fid = self.fid
        self.fid += 1
        u = st.pos()
        pos = max(u - (lead or self.cfg.LEAD), self.free.get(buf, -10**9), self.minread)
        for i, rd in enumerate(reads):
            self.add(min(pos + i, u), rd(fr), "ds", fid if i == len(reads) - 1 else ("part", fid))
            self.lastread = min(pos + i, u)
        if pair is None:
            pair = fc % 2 == 0
        for i, m in enumerate(mfmas):
            need = ()
            if i == 0:
                need = (fid,) + tuple(extra_need)
                if self.cfg.pairwait and pair:
                    need += (fid + 1,)
                if pair or not self.cfg.pairwait:
                    self.use(u, 1)
            st.mfma(m(fr), need)
        self.free[buf] = st.pos()

    def qk(self, kslot, fc0, cinit=True):
        for kb in range(2):
            for s in range(8):
                off = KSL(kslot) + 2048 * kb + 128 * s
                rd = [lambda fr, off=off: f"ds_read_b128 {r4('v', fr)}, v{vKa} offset:{off}"]
                ms = []
                for qb in range(4):
                    d = r4('v', S(kb, qb))
                    c = d if s else (r4('v', C(qb)) if cinit else "0")
                    ms.append(lambda fr, d=d, c=c, q=r4('a', Q(qb, s)): f"{MF} {d}, {r4('v', fr)}, {q}, {c}")
                self.frag(fc0 + kb * 8 + s, rd, ms)

    def pv(self, vslot, par, fc0, first=False):
        for db in range(16):
            off = VSL(vslot) + 128 * (db // 2) + 32 * (db % 2)
            rd = [lambda fr, off=off: f"ds_read_b64_tr_b16 v[{fr}:{fr+1}], v{vVa} offset:{off}",
                  lambda fr, off=off: f"ds_read_b64_tr_b16 v[{fr+2}:{fr+3}], v{vVa} offset:{off+2048}"]
            ms = []
            for qb in range(4):
                o = r4(OF(qb), O(qb, db))
                ms.append(lambda fr, o=o, p=r4('v', P(par, qb)): f"{MF} {o}, {r4('v', fr)}, {p}, {'0' if first else o}")
            self.frag(fc0 + db, rd, ms)

    def place(self, ops, start, end, cap=2):
        g = start
        for op in ops:
            text, u, minpos = op[:3]
            kind, fid = op[3:] if len(op) > 3 else ("x", None)
            g = max(g, minpos)
            while self.used.get(g, 0) + u > cap and g < end:
                g += 1
            self.add(g - 0.5, text, kind, fid, u)
        return g

    def finish(self, a):
        for d in self.deferred:
            self.place(*d)
        return self.st.emit(a)


def softmax_ops(par, kb, qb, tset):
    t = [vT + 4 * tset + i for i in range(4)]
    s = S(kb, qb)
    p = P(par, qb) + 2 * kb
    ex = [(f"v_exp_f32 v{t[i]}, v{s+i}", 2) for i in range(4)]
    rest = [(f"v_cvt_pk_bf16_f32 v{p}, v{t[0]}, v{t[1]}", 1),
            (f"v_add_f32 v{t[0]}, v{t[0]}, v{t[1]}", 1),
            (f"v_cvt_pk_bf16_f32 v{p+1}, v{t[2]}, v{t[3]}", 1),
            (f"v_add_f32 v{t[2]}, v{t[2]}, v{t[3]}", 1)]
    if kb == 0:
        rest.append((f"v_add_f32 v{vTS+qb}, v{t[0]}, v{t[2]}", 1))
    else:
        rest.append((f"v_add_f32 v{t[0]}, v{t[0]}, v{t[2]}", 1))
        rest.append((f"v_add_f32 v{vTS+qb}, v{vTS+qb}, v{t[0]}", 1))
    return ex, rest


def softmax_serial(a, par):
    for kb in range(2):
        for qb in range(4):
            ex, rest = softmax_ops(par, kb, qb, qb % 2)
            for t, _ in ex + rest:
                a(t)


def xreduce(a, op, t, u):
    a(f"""
    v_mov_b32 v{u}, v{t}
    v_permlane32_swap_b32 v{t}, v{u}
    {op} v{t}, v{t}, v{u}
    v_mov_b32 v{u}, v{t}
    v_permlane16_swap_b32 v{t}, v{u}
    {op} v{t}, v{t}, v{u}
    """)


def rowmax(a, qb, t, u):
    s0, s1 = S(0, qb), S(1, qb)
    a(f"""
    v_max3_f32 v{t}, v{s0}, v{s0+1}, v{s0+2}
    v_max3_f32 v{t}, v{t}, v{s0+3}, v{s1}
    v_max3_f32 v{t}, v{t}, v{s1+1}, v{s1+2}
    v_max_f32 v{t}, v{t}, v{s1+3}
    """)
    xreduce(a, "v_max_f32", t, u)


def dma_ops(kind, slot):
    st_, so, srd = (sT, sK0, SRD_K) if kind == "K" else (sTV, sV0, SRD_V)
    lb = KB + KSL(slot) if kind == "K" else VSL(slot)
    groups = []
    for gi in range(2):
        for t in range(4):
            txt = []
            if t == 0:
                txt.append(f"s_add_u32 m0, s{sLds}, {lb + gi*4128}")
                if gi:
                    txt.append(f"s_add_u32 s{so}, s{so}, 4096")
                else:
                    txt.append(f"s_add_u32 s{so}, s{st_}, s{sBase}")
            txt.append(f"buffer_load_dwordx4 v{vDm}, s[{srd}:{srd+3}], s{so} offen offset:{1024*t} lds")
            if gi == 0 and t == 1:
                txt.append(f"s_add_u32 s{st_}, s{st_}, 16384")
            if gi == 0 and t == 2:
                txt.append(f"s_and_b32 s{st_}, s{st_}, 0x7ffff")
            groups.append("\n".join(txt))
    return groups


GAP = 4 * SLOT
K31OFF, K30OFF = KB + KSL(1) - GAP, KB + KSL(0) - GAP
TOFF = [0, 3072, K30OFF, K30OFF + 3072, K31OFF, K31OFF + 3072, 0, 3072]
STAT = GAP + 4 * 7168
XV1 = 2 * SLOT
SRD_WO = SRD_X
sWA, sWB, sG, sXV, sXK = 48, 49, 50, 51, 52
sPA, sPB = 56, 60
eK, eVw, eVr, eFA, eFB, vL16 = 236, 240, 241, 242, 244, 246
vTA, vTA2 = vX3, vKa


def AF(ks, cb): return (ks * 3 + cb) * 4


def wa_dma(ks):
    g = []
    for p in range(3):
        t = []
        if p == 0:
            t.append(f"s_add_u32 m0, s{sG}, {TOFF[ks]}\ns_nop 0")
        t.append(f"buffer_load_dwordx4 v{vX0+p}, s[{SRD_WO}:{SRD_WO+3}], s{sWA} offen offset:{1024*p} lds" + (f" ;@T{ks}" if p == 2 else ""))
        if p == 2:
            t.append(f"s_add_u32 s{sWA}, s{sWA}, {32*896}")
        g.append("\n".join(t))
    return g


def wa_pull(ks):
    ops = []
    for cb in range(3):
        for hf in range(2):
            va, off = (vTA2, TOFF[ks] - K30OFF) if ks in (2, 3) else (vTA, TOFF[ks])
            r = AF(ks, cb) + 2 * hf
            ops.append((f"ds_read_b64_tr_b16 a[{r}:{r+1}], v{va} offset:{off + 1536*hf + 32*cb}", 1, 0, "ds", ("T", ks, cb, hf)))
    return ops


def gen_attn(a, name, cfg):
    B = Builder(cfg, vF, SEQ)
    st = B.st
    tag = {}

    def barrier(pos, need, lg=None):
        w = f"s_waitcnt vmcnt(@{tag[need]})\n" if need is not None else ""
        B.add(pos - 0.2, w + ("s_nop 0" if cfg.no_bar else "s_barrier"), "need" if lg else "x", lg, u=2)
        B.minread = pos - 0.1

    def spread(g, p0, p1):
        for i, txt in enumerate(g):
            pos = p0 + (p1 - p0) * i // len(g)
            B.add(pos - 0.3, txt, "x", None, u=txt.count("\n") + 1)

    def dma(kind, tile, slot, p0, p1):
        tag[f"{kind}{tile}"] = f"{kind}{tile}"
        g = dma_ops(kind, slot)
        g[7] += f" ;@{kind}{tile}"
        spread(g, p0, p1)

    B.minread = -0.5
    B.qk(0, 16, cinit=False)
    end = st.pos()
    barrier(6, None)
    dma("V", 0, 0, 7, 39)
    barrier(end, None)
    B.minread = -10**9
    dma("K", 2, 0, end + 0.22, end + 0.22)
    ini = Asm()
    for qb in range(4):
        rowmax(ini, qb, vTS + qb, vT + qb)
    for qb in range(4):
        for r in range(4):
            ini(f"v_sub_f32 v{C(qb)+r}, 0, v{vTS+qb}")
        for kb in range(2):
            for r in range(4):
                ini(f"v_sub_f32 v{S(kb,qb)+r}, v{S(kb,qb)+r}, v{vTS+qb}")
        ini(f"v_mov_b32 v{vL+qb}, 0")
    softmax_serial(ini, 0)
    if cfg.st("qk0"):
        st.add(end - 0.06, cfg.st("qk0") + "\ns_waitcnt lgkmcnt(0)", "waitall")
    st.add(end - 0.05, "\n".join(i.text for i in ini.items))
    if cfg.st("sm0"):
        st.add(end - 0.04, cfg.st("sm0") + "\ns_waitcnt lgkmcnt(0)", "waitall")

    def iteration(j, ret=None):
        par = j % 2
        qk = j < 31
        base = st.pos()
        end = base + (128 if qk else 64)
        lops = [(f"v_add_f32 v{vL+qb}, v{vL+qb}, v{vTS+qb}", 1, base + 1) for qb in range(4)]
        if qk:
            B.qk(1 - par, 0)
            barrier(base + cfg.YP, f"V{j}")
            dma("V", j + 1, 1 - par, base + cfg.YP + 1, base + cfg.YP + 1 + cfg.DW)
        B.pv(par, par, 16 if qk else 0, first=(j == 0))
        assert st.pos() == end
        if j <= 29:
            barrier(base + cfg.XP, f"K{j+2}")
        if j <= 28:
            dma("K", j + 3, 1 - par, base + cfg.XP + 1, base + cfg.XP + 1 + cfg.DWK)
        for k, jj in enumerate(cfg.l2e):
            if jj != j:
                continue
            t = 128 + 20 if j == 31 else vT
            pre = f"""s_lshr_b32 s3, s2, 3
            s_lshl_b32 s3, s3, 2
            s_add_u32 s3, s3, s{sWv}
            v_lshlrev_b32 v{t}, 7, v{vX4}
            s_mov_b32 m0, {STAT + 1024}
            """
            if k < 2:
                txt = f"""s_mul_i32 s3, s3, 12544
                s_add_u32 s3, s3, {4352*k}
                buffer_load_dword v{t}, s[{SRD_W}:{SRD_W+3}], s3 offen lds"""
            else:
                txt = f"""s_mul_i32 s3, s3, 7168
                s_and_b32 s{sTmp}, s2, 7
                s_mul_i32 s{sTmp}, s{sTmp}, {4*HWS_RG}
                s_add_u32 s3, s3, s{sTmp}
                buffer_load_dword v{t}, s[{SRD_WS}:{SRD_WS+3}], s3 offen lds"""
            B.add(base + 1.5 + 0.1 * k, pre + txt)
        if j == 29:
            spread(sum([wa_dma(k) for k in range(4)], []), base + cfg.XP + 1, base + 124)
        if j == 30:
            mr = B.minread
            tag["T3"] = "T3"
            barrier(base + cfg.XP, "T3")
            B.add(base + 64.5, f"v_add_u32 v{vTA2}, {K30OFF}, v{vTA}")
            spread(wa_dma(4) + wa_dma(5), base + cfg.XP + 1, base + cfg.XP + 19)
            e = B.place(wa_pull(0) + wa_pull(1), base + cfg.XP + 1, base + 108)
            assert e < base + 88, e - base
            B.place(wa_pull(2) + wa_pull(3), e, base + 120)
            g = wa_dma(6) + wa_dma(7)
            B.add(base + 90 - 0.35, "s_nop 0", "need", [("T", 1, 2, 1)])
            spread(g, base + 90, base + 108)
            barrier(base + 110, f"V31")
        if j == 31:
            tail31(base, lops)
        else:
            B.deferred.append((lops, base + 1, base + 30))
        if qk:
            ops = []
            gi = 0
            pend = []
            for kb in range(2):
                for qb in range(4):
                    ex, rest = softmax_ops(1 - par, kb, qb, gi % 2)
                    rdy = base + 32 * kb + 28 + qb + 4
                    seq = []
                    for i, e in enumerate(ex):
                        seq.append((e[0], e[1], rdy))
                        take = pend[:2]
                        pend = pend[2:]
                        seq += take
                    seq += pend
                    ops += seq
                    pend = [(t, u, rdy) for t, u in rest]
                    gi += 1
            ops += pend
            ops += [(f"v_max3_f32 v{vT}, v{vTS}, v{vTS+1}, v{vTS+2}", 1, 0),
                    (f"v_max_f32 v{vT}, v{vT}, v{vTS+3}", 1, 0),
                    (f"v_cmp_lt_f32 vcc, s{sThr}, v{vT}", 1, 0)]
            if cfg.no_sm:
                ops = ops[-3:]
            B.deferred.append((ops, base + 32, end - 1))
            st.add(end - 0.05, f"s_mov_b32 s{sRet}, {ret}\ns_cbranch_vccnz {name}_slow\n{name}_ret{ret}:")

    def tail31(base, lops):
        l = vX4
        T = vS
        x = Asm()
        for qb in range(4):
            x(f"v_mov_b32 v{T+qb}, v{vL+qb}")
        for qb in range(4):
            x(f"v_permlane32_swap_b32 v{vL+qb}, v{T+qb}")
        for qb in range(4):
            x(f"v_add_f32 v{vL+qb}, v{vL+qb}, v{T+qb}")
        for qb in range(4):
            x(f"v_mov_b32 v{T+qb}, v{vL+qb}")
        for qb in range(4):
            x(f"v_permlane16_swap_b32 v{vL+qb}, v{T+qb}")
        x(f"""
        v_add_f32 v{vL}, v{vL}, v{T}
        v_add_f32 v{vL+1}, v{vL+1}, v{T+1}
        v_add_f32 v{T+5}, v{vL+2}, v{T+2}
        v_add_f32 v{T+7}, v{vL+3}, v{T+3}
        v_mov_b32 v{T+4}, v{C(2)}
        v_mov_b32 v{T+6}, v{C(3)}
        v_and_b32 v{T+8}, 15, v{l}
        s_lshl_b32 s3, s{sWv}, 8
        s_add_u32 s3, s3, 0x9000
        v_lshl_add_u32 v{T+8}, v{T+8}, 4, s3
        """)
        ops = lops + [(i.text, 1, 0) for i in x.items]
        ops.append((f"ds_write_b128 v{T+8}, v[{T+4}:{T+7}] offset:{STAT - 4096*9}", 1, 0, "ds", "stw"))
        y = Asm()
        y(f"""
        v_xor_b32 v{T+8}, 0x100, v{T+8}
        v_lshlrev_b32 v{vL16}, 4, v{l}
        v_add_u32 v{eVr}, s{sXV}, v{vL16}
        v_xor_b32 v{eVw}, 0x2000, v{eVr}
        v_lshlrev_b32 v{T+9}, 1, v{eVr}
        v_sub_u32 v{T+9}, v{T+9}, v{vL16}
        v_add_u32 v{eK}, {KB}, v{T+9}
        """)
        for j in range(1, 4):
            y(f"v_xor_b32 v{T+10}, {j*16384}, v{T+9}\nv_add_u32 v{eK+j}, {KB}, v{T+10}")
        ops += [(i.text, 1, 0) for i in y.items]
        b0 = base + cfg.B0
        B.add(base + 1 - 0.4, "s_waitcnt vmcnt(@T5)")
        B.place(wa_pull(4) + wa_pull(5), base + 1, b0 - 2, cap=2)
        B.deferred.append((ops, base + 1, b0 - 1, 3))
        mr = B.minread
        barrier(b0, None, lg=["stw", ("T", 5, 2, 1)])
        B.add(b0 + 0.5, f"ds_read_b128 v[{T+4}:{T+7}], v{T+8} offset:{STAT - 4096*9}", "ds", "str")
        for db in range(12):
            for q in range(2):
                va, off = (eK + 1, (2 * db + q) * 1024) if db < 8 else (eVw, (2 * (db - 8) + q) * 1024)
                pos = max(base + 4 * db + 8 + q, b0 + 1 + (2 * db + q) * (base + 62 - b0) // 24)
                B.add(pos - 0.45, f"ds_write_b128 v{va}, {r4('a', O(2+q, db))} offset:{off}", "ds", ("xw", db, q))
        B.add(b0 + 6 - 0.4, "s_waitcnt vmcnt(@T7)")
        B.place(wa_pull(6) + wa_pull(7), b0 + 6, base + 63, cap=2)
        z = []
        for step in range(10):
            for qb in range(2):
                cB, lB = T + 4 + 2 * qb, T + 5 + 2 * qb
                t8, t9 = T + 10 + 2 * qb, T + 11 + 2 * qb
                FA, FB = eFA + qb, eFB + qb
                txt = [f"v_min_f32 v{t8}, v{C(qb)}, v{cB}",
                       f"v_sub_f32 v{FA}, v{t8}, v{C(qb)}",
                       f"v_sub_f32 v{FB}, v{t8}, v{cB}",
                       f"v_exp_f32 v{FA}, v{FA}",
                       f"v_exp_f32 v{FB}, v{FB}",
                       f"v_mul_f32 v{t9}, v{FA}, v{vL+qb}",
                       f"v_fma_f32 v{t9}, v{FB}, v{lB}, v{t9}",
                       f"v_rcp_f32 v{t9}, v{t9}",
                       f"v_mul_f32 v{FA}, v{FA}, v{t9}",
                       f"v_mul_f32 v{FB}, v{FB}, v{t9}"][step]
                if step == 0 and qb == 0:
                    z.append((txt, 1, 0, "need", ["str"]))
                else:
                    z.append((txt, 1, 0))
        B.deferred.append((z, b0 + 8, base + 63, 3))

    iteration(0, ret=0)
    if cfg.st("loop0"):
        st.add(st.pos() - 0.011, "s_memrealtime s[68:69]\ns_memtime s[72:73]\ns_waitcnt lgkmcnt(0)")
    st.add(st.pos() - 0.01, "loop", "cut")
    st.add(st.pos() - 0.009, f"{name}_loop:")
    iteration(1, ret=1)
    iteration(2, ret=2)
    st.add(st.pos() - 0.02, f"s_sub_u32 s{sCnt}, s{sCnt}, 1\ns_cmp_lg_u32 s{sCnt}, 0\ns_cbranch_scc1 {name}_loop")
    st.add(st.pos() - 0.01, "loopend", "cut")
    if cfg.st("loop1"):
        st.add(st.pos() - 0.009, "s_memrealtime s[70:71]\ns_memtime s[74:75]\ns_waitcnt lgkmcnt(0)")
    tag["V29"], tag["K31"] = "V3", "K5"
    for j in range(29, 32):
        iteration(j, ret=j - 26)
    cuts, out = B.finish(a)
    n0, n1 = len(cuts["loop"][1]), len(cuts["loopend"][1])
    assert n0 == n1, (cuts["loop"][1], cuts["loopend"][1])


def gen_slow(a, name):
    a(f"{name}_slow:")
    a("s_nop 7")
    a("s_nop 7")
    D = vTS
    F = vT
    for qb in range(4):
        rowmax(a, qb, D + qb, vT + qb)
    for qb in range(4):
        a(f"v_max_f32 v{D+qb}, 0, v{D+qb}")
        a(f"v_sub_f32 v{F+qb}, 0, v{D+qb}")
        a(f"v_exp_f32 v{F+qb}, v{F+qb}")
    for qb in range(4):
        a(f"v_mul_f32 v{vL+qb}, v{vL+qb}, v{F+qb}")
        for r in range(4):
            a(f"v_sub_f32 v{C(qb)+r}, v{C(qb)+r}, v{D+qb}")
        for kb in range(2):
            for r in range(4):
                a(f"v_sub_f32 v{S(kb,qb)+r}, v{S(kb,qb)+r}, v{D+qb}")
        if qb < 2:
            for i in range(64):
                a(f"v_mul_f32 v{64*qb+i}, v{64*qb+i}, v{F+qb}")
        else:
            for i0 in range(0, 64, 4):
                for i in range(4):
                    a(f"v_accvgpr_read_b32 v{vT+4+i}, a{64*qb+i0+i}")
                for i in range(4):
                    a(f"v_mul_f32 v{vT+4+i}, v{vT+4+i}, v{F+qb}")
                for i in range(4):
                    a(f"v_accvgpr_write_b32 a{64*qb+i0+i}, v{vT+4+i}")
    a(f"s_bitcmp1_b32 s{sRet}, 0")
    a(f"s_cbranch_scc1 {name}_slow0")
    softmax_serial(a, 1)
    a("s_nop 1")
    a(f"s_cmp_eq_u32 s{sRet}, 0")
    a(f"s_cbranch_scc1 {name}_ret0")
    a(f"s_cmp_eq_u32 s{sRet}, 2")
    a(f"s_cbranch_scc1 {name}_ret2")
    a(f"s_branch {name}_ret4")
    a(f"{name}_slow0:")
    softmax_serial(a, 0)
    a("s_nop 1")
    a(f"s_cmp_eq_u32 s{sRet}, 1")
    a(f"s_cbranch_scc1 {name}_ret1")
    a(f"s_branch {name}_ret3")


def srd(a, r, lo, hi, nrec):
    a(f"s_mov_b32 s{r}, s{lo}\ns_mov_b32 s{r+1}, s{hi}\ns_mov_b32 s{r+2}, {nrec}\ns_mov_b32 s{r+3}, 0x00020000")


def gen_setup(a, name, cfg):
    l = vX4
    a(f"""
    s_cmp_ge_u32 s2, {KA_GRID}
    s_cbranch_scc1 {name}_end
    s_load_dwordx8 s[4:11], s[0:1], 0
    s_load_dwordx4 s[80:83], s[0:1], 48
    s_load_dwordx2 s[84:85], s[0:1], 88
    s_load_dwordx2 s[94:95], s[0:1], 32
    s_load_dwordx2 s[96:97], s[0:1], 64
    """)
    a(cfg.st("start"))
    a(f"""
    v_lshrrev_b32 v{vX0}, 6, v0
    v_and_b32 v{l}, 63, v0
    s_and_b32 s29, s2, 7
    v_readfirstlane_b32 s{sWv}, v{vX0}
    s_lshr_b32 s{sT}, s2, 3
    s_lshr_b32 s{sHD}, s{sT}, 4
    s_lshl_b32 s3, s29, 1
    s_add_u32 s{sHD}, s{sHD}, s3
    s_and_b32 s{sRB}, s{sT}, 15
    s_lshr_b32 s{sRG}, s{sWv}, 1
    s_and_b32 s{sKH}, s{sWv}, 1
    s_lshl_b32 s{sT}, s{sT}, 14
    s_mov_b32 s{sTV}, s{sT}
    s_lshl_b32 s{sBase}, s{sKH}, 19
    s_lshl_b32 s3, s{sRG}, 13
    s_add_u32 s{sBase}, s{sBase}, s3
    s_mul_i32 s{sLds}, s{sKH}, {SLOT}
    s_mul_i32 s3, s{sRG}, 8320
    s_add_u32 s{sLds}, s{sLds}, s3
    s_mov_b32 s{sThr}, 0x5f800000
    s_mov_b32 s{sCnt}, 14
    s_lshl_b32 s29, s29, 20
    s_sub_u32 s{sXk}, s{sRB}, 14
    s_cmp_ge_u32 s{sRB}, 14
    s_cselect_b32 s{sXk}, s{sXk}, s{sRB}
    """)
    a(f"""
    s_lshl_b32 s3, s{sRB}, 7
    s_lshl_b32 s{sTmp}, s{sWv}, 5
    s_add_u32 s{sTmp}, s{sTmp}, s3
    s_mul_i32 s{sTmp}, s{sTmp}, 896
    """)
    lanecalc(a, pT, l, [(0, 4, 896), (4, 2, 16)], add=f"s{sTmp}")
    a(f"v_add_u32 v{pT+1}, {16*896}, v{pT}")
    a(f"""
    s_lshl_b32 s{sTmp}, s{sXk}, 6
    s_waitcnt lgkmcnt(0)
    """)
    a(cfg.st("karg"))
    srd(a, SRD_X, 4, 5, 2048 * 896)
    for i in range(14):
        for qb in range(2):
            r = aX + (qb * 14 + i) * 4
            a(f"buffer_load_dwordx4 a[{r}:{r+3}], v{pT+qb}, s[{SRD_X}:{SRD_X+3}], s{sTmp} offen")
        if i < 13:
            a(f"""
            s_add_u32 s{sTmp}, s{sTmp}, 64
            s_cmp_eq_u32 s{sTmp}, 896
            s_cselect_b32 s{sTmp}, 0, s{sTmp}
            """)
    a(f"""
    s_cmp_ge_u32 s{sWv}, 2
    s_cbranch_scc1 {name}_wmlp
    """)
    srd(a, SRD_W, 10, 11, 448 * 8192)
    a(f"""
    s_mul_i32 s{sMa}, s{sWv}, 8320
    s_add_u32 s{sMb}, s{sMa}, 4128
    s_mov_b32 s{sWst}, {32*8192}
    s_mov_b32 s{sWtot}, {14*32*8192}
    s_lshl_b32 s{sWcol}, s{sHD}, 9
    s_lshl_b32 s3, s{sWv}, 16
    s_add_u32 s{sWcol}, s{sWcol}, s3
    """)
    lanecalc(a, pD, l, [(2, 1, 8192), (3, 3, 64), (0, 2, 16)])
    for i in range(1, 8):
        gi, t = i // 4, i % 4
        a(f"v_add_u32 v{pD+i}, {(16*(t//2) + 4*(t%2) + 2*gi)*8192 - 1024*t}, v{pD}")
    a(f"""
    s_branch {name}_wdone
    {name}_wmlp:
    s_cmp_eq_u32 s{sWv}, 2
    s_cselect_b32 s{SRD_W}, s80, s82
    s_cselect_b32 s{SRD_W+1}, s81, s83
    s_mov_b32 s{SRD_W+2}, {448*3584}
    s_mov_b32 s{SRD_W+3}, 0x00020000
    s_cselect_b32 s{sMa}, {WG_OFF}, s{sMa}
    s_cselect_b32 s{sMa}, s{sMa}, {WU_OFF}
    s_add_u32 s{sMb}, s{sMa}, 4096
    s_mov_b32 s{sWst}, {32*3584}
    s_mov_b32 s{sWtot}, {14*32*3584}
    s_mul_i32 s{sWcol}, s{sHD}, 224
    s_movk_i32 s86, 4682
    """)
    for i in range(7):
        e, pos = vX0, vX2
        a(f"""
        v_add_u32 v{e}, {64*i}, v{l}
        v_mul_u32_u24 v{pos}, s86, v{e}
        v_lshrrev_b32 v{pos}, 16, v{pos}
        v_mul_u32_u24 v{vX3}, 14, v{pos}
        v_sub_u32 v{e}, v{e}, v{vX3}
        """)
        lanecalc(a, pD + i, pos, [(0, 2, 3584), (2, 1, 8 * 3584), (3, 1, 4 * 3584), (4, 1, 16 * 3584)])
        a(f"v_lshl_add_u32 v{pD+i}, v{e}, 4, v{pD+i}")
        if i % 4:
            a(f"v_subrev_u32 v{pD+i}, {1024*(i%4)}, v{pD+i}")
    a(f"""
    v_mov_b32 v{pD+7}, 0x4000000
    {name}_wdone:
    s_mul_i32 s{sKs}, s{sXk}, s{sWst}
    """)
    for k in range(4):
        for g in wdma_ops((13 - k) % 4):
            a(g)
    a(f"""
    s_add_u32 s{SRD_K}, s6, s29
    s_addc_u32 s{SRD_K+1}, s7, 0
    s_mov_b32 s{SRD_K+2}, 0x100000
    s_mov_b32 s{SRD_K+3}, 0x00020000
    s_add_u32 s{SRD_V}, s8, s29
    s_addc_u32 s{SRD_V+1}, s9, 0
    s_mov_b32 s{SRD_V+2}, 0x100000
    s_mov_b32 s{SRD_V+3}, 0x00020000
    """)
    srd(a, SRD_WS, 84, 85, 64 << 20)
    lanecalc(a, vDm, l, [(2, 1, 512), (3, 3, 64), (0, 2, 16)])
    a(f"s_mul_i32 s{sTmp}, s{sKH}, {SLOT}")
    lanecalc(a, vVa, l, [(3, 1, 4128), (4, 1, 8320), (5, 1, 1024), (2, 1, 64), (0, 2, 8)], add=f"s{sTmp}")
    a(f"s_add_u32 s{sTmp}, s{sTmp}, {KB}")
    lanecalc(a, vKa, l, [(1, 1, 4128), (2, 1, 8320), (3, 1, 1024), (0, 1, 64), (4, 2, 16)], add=f"s{sTmp}")
    LQ, LG = vX2, vX3
    lanecalc(a, LQ, l, [(3, 1, 4128), (4, 1, 8320), (5, 1, 2048), (2, 1, 64), (0, 2, 8)], add=WB)
    lanecalc(a, LG, l, [(2, 2, 224), (4, 1, 896), (5, 1, 3584), (0, 2, 8)], add=WB)
    a(f"""
    s_lshl_b32 s3, s{sKH}, 9
    v_add_u32 v{pA}, s3, v{LQ}
    s_lshl_b32 s3, s{sKH}, 7
    v_add_u32 v{pC}, s3, v{LG}
    s_cmp_eq_u32 s{sKH}, 0
    s_cbranch_scc1 {name}_b0
    v_add_u32 v{pB}, {128*3+32}, v{LQ}
    v_add_u32 v{pB+1}, {128*3+32+1024}, v{LQ}
    v_add_u32 v{pB+2}, {128*7+32}, v{LQ}
    v_add_u32 v{pB+3}, {128*7+32+1024}, v{LQ}
    s_branch {name}_b1
    {name}_b0:
    v_add_u32 v{pB}, {WG_OFF+96}, v{LG}
    v_add_u32 v{pB+1}, {WG_OFF+96+1792}, v{LG}
    v_add_u32 v{pB+2}, {WU_OFF+96}, v{LG}
    v_add_u32 v{pB+3}, {WU_OFF+96+1792}, v{LG}
    {name}_b1:
    v_add_u32 v{pA+1}, {2*WSL}, v{pA}
    v_add_u32 v{pC+1}, {2*WSL}, v{pC}
    """)
    for i in range(4):
        a(f"v_add_u32 v{pB+4+i}, {2*WSL}, v{pB+i}")
    a(f"""
    s_lshl_b32 s3, s{sWv}, 11
    v_lshlrev_b32 v{vX0}, 4, v{l}
    v_add_u32 v{pXW}, s3, v{vX0}
    s_xor_b32 s3, s3, 0x800
    v_add_u32 v{pXR}, s3, v{vX0}
    """)


def wdma_ops(slot):
    groups = []
    for i in range(8):
        gi, t = i // 4, i % 4
        txt = []
        if t == 0:
            txt.append(f"s_add_u32 m0, s{sMb if gi else sMa}, {WB + slot*WSL}")
            if gi == 0:
                txt.append(f"s_add_u32 s{sW}, s{sKs}, s{sWcol}")
            else:
                txt.append("s_nop 0")
        txt.append(f"buffer_load_dwordx4 v{pD+i}, s[{SRD_W}:{SRD_W+3}], s{sW} offen offset:{1024*t} lds")
        if i == 1:
            txt.append(f"s_add_u32 s{sKs}, s{sKs}, s{sWst}")
        if i == 2:
            txt.append(f"s_cmp_eq_u32 s{sKs}, s{sWtot}\ns_cselect_b32 s{sKs}, 0, s{sKs}")
        groups.append("\n".join(txt))
    return groups


def bf16r(a, v, t):
    a(f"v_cvt_pk_bf16_f32 v{t}, v{v}, v{v}\nv_lshlrev_b32 v{v}, 16, v{t}")


def norm_ops(i):
    ops = []
    for qb in range(2):
        for r in range(4):
            src = aX + (qb * 14 + i) * 4 + r
            t = pT + 3 * ((qb * 4 + r) % 4)
            dst = pXO + (i % 3) * 8 + qb * 4 + r
            ops += [(f"v_accvgpr_read_b32 v{t}, a{src}", 1, 0),
                    (f"v_lshlrev_b32 v{t+1}, 16, v{t}", 1, 0),
                    (f"v_and_b32 v{t+2}, s{sC}, v{t}", 1, 0),
                    (f"v_fma_f32 v{t+1}, v{t+1}, v{pR+qb}, v{pNM+qb}", 1, 0),
                    (f"v_fma_f32 v{t+2}, v{t+2}, v{pR+qb}, v{pNM+qb}", 1, 0),
                    (f"v_cvt_pk_bf16_f32 v{dst}, v{t+1}, v{t+2}", 1, 0)]
        d = pXO + (i % 3) * 8 + qb * 4
        ops.append((f"ds_write_b128 v{pXW}, {r4('v', d)} offset:{(i%2)*8192 + qb*1024}", 1, 0, "ds", ("xw", i, qb)))
    return ops


def xread_ops(i):
    return [(f"ds_read_b128 {r4('v', pXP + (i%2)*8 + qb*4)}, v{pXR} offset:{(i%2)*8192 + qb*1024}", 1, 0, "ds", ("xr", i, qb)) for qb in range(2)]


def gen_prologue(a, name, cfg):
    l = vX4
    ones, D1, D2 = 0, 4, 12
    a(f"s_mov_b32 s{sC}, 0xffff0000")
    for r in range(4):
        a(f"v_mov_b32 v{ones+r}, 0x3f803f80")
    a(f"""
    v_lshrrev_b32 v{vX0}, 4, v{l}
    v_lshlrev_b32 v{vX0}, 2, v{vX0}
    v_and_b32 v{vX1}, 15, v{l}
    v_sub_u32 v{vX0}, v{vX1}, v{vX0}
    """)
    for r in range(4):
        a(f"v_cmp_eq_u32 s[{sM0+2*r}:{sM0+2*r+1}], {r}, v{vX0}")
    for i in range(14):
        a(f"s_waitcnt vmcnt({32 + 2*(13-i)})")
        for qb in range(2):
            x = r4('a', aX + (qb * 14 + i) * 4)
            d1, d2 = r4('v', D1 + 4 * qb), r4('v', D2 + 4 * qb)
            a(f"{MF} {d1}, {r4('v', ones)}, {x}, {d1 if i else '0'}")
            a(f"{MF} {d2}, {x}, {x}, {d2 if i else '0'}")
    a(cfg.st("stats"))
    a("s_mov_b32 s3, 0x3b124925")
    a("s_mov_b32 s86, 0x3727c5ac")
    for qb in range(2):
        t, u, m = pT + 4 * qb, pT + 4 * qb + 1, pT + 4 * qb + 2
        a(f"v_cndmask_b32 v{t}, 0, v{D2+4*qb}, s[{sM0}:{sM0+1}]")
        for r in range(1, 4):
            a(f"v_cndmask_b32 v{t}, v{t}, v{D2+4*qb+r}, s[{sM0+2*r}:{sM0+2*r+1}]")
        xreduce(a, "v_add_f32", t, u)
        a(f"""
        v_mul_f32 v{m}, s3, v{D1+4*qb}
        v_mul_f32 v{t}, s3, v{t}
        v_fma_f32 v{t}, -v{m}, v{m}, v{t}
        v_max_f32 v{t}, 0, v{t}
        """)
        bf16r(a, m, u)
        bf16r(a, t, u)
        a(f"v_add_f32 v{t}, s86, v{t}")
        bf16r(a, t, u)
        a(f"v_sqrt_f32 v{t}, v{t}")
        bf16r(a, t, u)
        a(f"""
        v_rcp_f32 v{pR+qb}, v{t}
        v_mul_f32 v{pNM+qb}, v{m}, v{pR+qb}
        v_sub_f32 v{pNM+qb}, 0, v{pNM+qb}
        """)
    for i in range(2):
        for op in norm_ops(i):
            a(op[0])
    a("s_waitcnt vmcnt(24) lgkmcnt(0)\ns_barrier")
    for i in range(2):
        for op in xread_ops(i):
            a(op[0])
    a(cfg.st("gemm0"))
    a("s_waitcnt lgkmcnt(0)")

    B = Builder(cfg, pF, [0, 1, 2, 3, 4] * 3)
    st = B.st
    issued = ["W0", "W1", "W2", "W3"]
    B.minread = -0.5
    for i in range(14):
        base = st.pos()
        if cfg.st(f"k{i}"):
            B.add(base - 0.01, cfg.st(f"k{i}") + "\ns_waitcnt lgkmcnt(0)", "waitall")
        slot = (13 - i) % 4
        h, so = slot // 2, (slot % 2) * WSL
        bop = [r4('v', pXO + (i % 3) * 8), r4('v', pXO + (i % 3) * 8 + 4), r4('v', pXP + (i % 2) * 8), r4('v', pXP + (i % 2) * 8 + 4)]
        for f in range(15):
            if f < 7:
                ad = [(pA + h, so + 128 * (f // 2) + 32 * (f % 2) + 1024 * hf) for hf in range(2)]
                acc = lambda qb, f=f: r4('v', (f * 4 + qb) * 4)
            elif f < 9:
                ad = [(pB + 4 * h + 2 * (f - 7) + hf, so) for hf in range(2)]
                acc = lambda qb, f=f: r4('v', (f * 4 + qb) * 4)
            else:
                c = f - 9
                ad = [(pC + h, so + (WU_OFF if c % 2 else WG_OFF) + 32 * (c // 2) + 1792 * hf) for hf in range(2)]
                acc = lambda qb, c=c: r4('a', aH + (c * 4 + qb) * 4)
            rd = [lambda fr, x=ad[0]: f"ds_read_b64_tr_b16 v[{fr}:{fr+1}], v{x[0]} offset:{x[1]}",
                  lambda fr, x=ad[1]: f"ds_read_b64_tr_b16 v[{fr+2}:{fr+3}], v{x[0]} offset:{x[1]}"]
            ms = [lambda fr, qb=qb, acc=acc: f"{MF} {acc(qb)}, {r4('v', fr)}, {bop[qb]}, {acc(qb) if i else '0'}" for qb in range(4)]
            B.frag(f, rd, ms, extra_need=([("xr", i, 0), ("xr", i, 1)] if f == 0 else ()), pair=(f % 2 == 0 and f < 14) or f == 14 and False)
        bp = base + cfg.PBAR
        if i < 13:
            n = 8 * (len(issued) - 1 - issued.index(f"W{i+1}"))
            if "PF" in issued[issued.index(f"W{i+1}"):]:
                n -= 7
            B.add(bp - 0.2, f"s_waitcnt vmcnt({n})\n" + ("s_nop 0" if cfg.p_nobar else "s_barrier"), "need", [("xw", i + 1, 0), ("xw", i + 1, 1)], u=3)
            B.minread = bp - 0.1
            g = []
            if 1 <= i <= 10:
                issued.append(f"W{i+3}")
                g = wdma_ops((13 - (i + 3)) % 4)
                if cfg.p_nodma:
                    g = []
            elif i == 11:
                issued.append("K0")
                g = dma_ops("K", 0)
                issued.append("PF")
                g.append(f"v_lshlrev_b32 v{vX0}, 7, v{l}\ns_add_u32 s{sV0}, s{sTV}, s{sBase}\nbuffer_load_dword v247, v{vX0}, s[{SRD_V}:{SRD_V+3}], s{sV0} offen")
            elif i == 12:
                issued.append("K1")
                g = dma_ops("K", 1)
            for n_, txt in enumerate(g):
                B.add(bp + 1 + cfg.PDW * n_ // 8 - 0.3, txt, "x", None, u=txt.count("\n") + 1)
        ops = []
        if 1 <= i < 13:
            ops += xread_ops(i + 1)
        if i + 2 < 14:
            ops += [o for o in norm_ops(i + 2) if not cfg.p_nonorm or o[0].startswith("ds_")]
        B.deferred.append((ops, bp + 1, base + 59))
    B.finish(a)
    a(cfg.st("gemm_end"))
    a(f"""
    s_mov_b32 s{sC+1}, 0x3db8aa3b
    s_lshl_b32 s3, s{sRG}, 15
    s_lshl_b32 s{sTmp}, s{sKH}, 14
    s_add_u32 s3, s3, s{sTmp}
    s_xor_b32 s{sTmp}, s3, 0x4000
    v_lshlrev_b32 v{vX0}, 4, v{l}
    v_add_u32 v{pXR}, s3, v{vX0}
    v_add_u32 v{pXW}, s{sTmp}, v{vX0}
    """)
    W0, W1, W2, W3 = pA, pA + 1, pC, pC + 1
    lanecalc(a, vX0, l, [(5, 1, 256), (0, 4, 16), (4, 1, 8)], stmp=86)
    a(f"""
    v_add_u32 v{W2}, s3, v{vX0}
    v_add_u32 v{W3}, s{sTmp}, v{vX0}
    s_lshl_b32 s3, s{sKH}, 12
    v_add_u32 v{W0}, s3, v{W2}
    v_add_u32 v{W1}, s3, v{W3}
    s_waitcnt vmcnt(0)
    s_barrier
    """)

    def qpost(f, wa, boff):
        for qb in range(4):
            r = (f * 4 + qb) * 4
            for k in range(4):
                a(f"v_mul_f32 v{r+k}, s{sC+1}, v{r+k}")
            a(f"v_cvt_pk_bf16_f32 v{r}, v{r}, v{r+1}")
            a(f"v_cvt_pk_bf16_f32 v{r+1}, v{r+2}, v{r+3}")
            a(f"ds_write_b64 v{wa[qb//2]}, v[{r}:{r+1}] offset:{(qb%2)*8192 + boff}")

    for f in range(7):
        qpost(f, (W0, W1), (f // 2) * 1024 + 512 * (f % 2))
    sH0, sH1, sGb = sMa, sMb, sKs
    a(f"""
    s_lshl_b32 s3, s{sRB}, 1
    s_add_u32 s3, s3, s{sRG}
    s_mul_i32 s3, s3, {HWS_RG}
    s_lshl_b32 s{sTmp}, s{sKH}, 11
    s_add_u32 s{sH0}, s3, s{sTmp}
    s_xor_b32 s{sTmp}, s{sTmp}, 0x800
    s_add_u32 s{sH1}, s3, s{sTmp}
    s_mul_i32 s{sGb}, s{sHD}, 7
    s_mov_b32 s{sC+2}, 0xc0135761
    s_mov_b32 s{sC+3}, 0xbdd2d3e8
    v_mov_b32 v{pB}, s{sC+2}
    v_lshlrev_b32 v{pB+1}, 4, v{l}
    """)

    def hpost(gsrc, usrc, fb_expr):
        a(fb_expr)
        a(f"""
        s_lshr_b32 s{sTmp}, s3, 1
        s_lshl_b32 s{sTmp}, s{sTmp}, 12
        s_and_b32 s3, s3, 1
        s_lshl_b32 s3, s3, 3
        s_add_u32 s{sTmp}, s{sTmp}, s3
        s_add_u32 s{sW}, s{sTmp}, s{sH0}
        s_add_u32 s{sWcol}, s{sTmp}, s{sH1}
        """)
        for qb in range(4):
            gf, gr = gsrc(qb)
            uf, ur = usrc(qb)
            T = pF + 12 * (qb % 2) * 2
            if gf == 'a':
                for k in range(4):
                    a(f"v_accvgpr_read_b32 v{T+k}, a{gr+k}")
                    a(f"v_accvgpr_read_b32 v{T+4+k}, a{ur+k}")
                gr, ur = T, T + 4
            Z = T + 8
            for k in range(4):
                a(f"v_mul_f32 v{Z+k}, v{gr+k}, v{gr+k}")
            for k in range(4):
                a(f"v_fma_f32 v{Z+k}, v{Z+k}, s{sC+3}, v{pB}")
            for k in range(4):
                a(f"v_mul_f32 v{Z+k}, v{Z+k}, v{gr+k}")
            for k in range(4):
                a(f"v_exp_f32 v{Z+k}, v{Z+k}")
            for k in range(4):
                a(f"v_mul_f32 v{ur+k}, v{ur+k}, v{gr+k}")
            for k in range(4):
                a(f"v_add_f32 v{Z+k}, 1.0, v{Z+k}")
            for k in range(4):
                a(f"v_rcp_f32 v{Z+k}, v{Z+k}")
            for k in range(4):
                a(f"v_mul_f32 v{Z+k}, v{Z+k}, v{ur+k}")
            a(f"v_cvt_pk_bf16_f32 v{Z+4}, v{Z}, v{Z+1}")
            a(f"v_cvt_pk_bf16_f32 v{Z+5}, v{Z+2}, v{Z+3}")
            a(f"buffer_store_dwordx2 v[{Z+4}:{Z+5}], v{pB+1}, s[{SRD_WS}:{SRD_WS+3}], s{sW if qb < 2 else sWcol} offen offset:{1024*(qb%2)}{cfg.hmod}")

    a(f"s_cmp_eq_u32 s{sKH}, 0\ns_cbranch_scc1 {name}_pb0")
    qpost(7, (W2, W3), 3 * 1024 + 512)
    qpost(8, (W2, W3), 7 * 1024 + 512)
    a(f"s_branch {name}_pb1\n{name}_pb0:")
    hpost(lambda qb: ('v', (7 * 4 + qb) * 4), lambda qb: ('v', (8 * 4 + qb) * 4), f"s_add_u32 s3, s{sGb}, 3")
    a(f"{name}_pb1:")
    a(cfg.st("qw"))
    a("s_waitcnt lgkmcnt(0)\ns_barrier")
    for qb in range(4):
        for s in range(8):
            a(f"ds_read_b128 {r4('a', Q(qb, s))}, v{pXR if qb < 2 else pXW} offset:{(qb%2)*8192 + s*1024}")
    for f in range(3):
        hpost(lambda qb: ('a', aH + ((2 * f) * 4 + qb) * 4), lambda qb: ('a', aH + ((2 * f + 1) * 4 + qb) * 4),
              f"s_lshl_b32 s3, s{sKH}, 2\ns_add_u32 s3, s3, s{sGb}\ns_add_u32 s3, s3, {f}")
    srd(a, SRD_WO, 94, 95, 4096 * 896)
    a(f"""
    s_mul_i32 s3, s{sHD}, {256*896}
    s_lshl_b32 s{sWB}, s{sWv}, 7
    s_add_u32 s{sWB}, s{sWB}, s3
    s_mul_i32 s{sWA}, s{sWv}, 96
    s_add_u32 s{sWA}, s{sWA}, s3
    s_add_u32 s{sWA}, s{sWA}, 512
    s_mul_i32 s{sTmp}, s{sRB}, {16*896}
    s_add_u32 s3, s3, s{sTmp}
    s_mul_i32 s{sTmp}, s{sWv}, {28*128}
    s_add_u32 s3, s3, s{sTmp}
    v_lshlrev_b32 v{vX0}, 7, v{l}
    buffer_load_dword v1, v{vX0}, s[{SRD_WO}:{SRD_WO+3}], s3 offen
    s_mov_b32 s{SRD_W}, s96
    s_mov_b32 s{SRD_W+1}, s97
    s_mov_b32 s{SRD_W+2}, {1792*896}
    s_mov_b32 s{SRD_W+3}, 0x00020000
    s_lshl_b32 s3, s2, 2
    s_add_u32 s3, s3, s{sWv}
    s_mul_i32 s3, s3, 1568
    v_lshlrev_b32 v{vX0}, 5, v{l}
    buffer_load_dword v2, v{vX0}, s[{SRD_W}:{SRD_W+3}], s3 offen
    s_mul_i32 s{sG}, s{sWv}, 7168
    s_add_u32 s{sG}, s{sG}, {GAP}
    s_lshl_b32 s{sXV}, s{sWv}, 13
    s_lshl_b32 s{sXK}, s{sWv}, 14
    s_add_u32 s{sXK}, s{sXK}, {KB}
    s_movk_i32 s86, 10923
    """)
    for j in range(4):
        a(f"""
        s_xor_b32 s3, s{sWv}, {j}
        s_lshl_b32 s{sTmp}, s{sRB}, 2
        s_add_u32 s3, s3, s{sTmp}
        s_lshl_b32 s3, s3, 4
        s_add_u32 s3, s3, s{sHD}
        s_mul_i32 s3, s3, {28*1024}
        s_add_u32 s3, s3, {PART}
        s_lshl_b32 s{sTmp}, s{sWv}, 12
        s_add_u32 s{sPB+j}, s3, s{sTmp}
        s_mul_i32 s{sTmp}, s{sWv}, 3072
        s_add_u32 s3, s3, s{sTmp}
        s_add_u32 s{sPA+j}, s3, {16*1024}
        """)
    a("s_movk_i32 s3, 896")
    for p_ in range(3):
        e, row = pT, pT + 1
        a(f"""
        v_add_u32 v{e}, {64*p_}, v{l}
        v_mul_u32_u24 v{row}, s86, v{e}
        v_lshrrev_b32 v{row}, 16, v{row}
        v_mul_u32_u24 v{pT+2}, 6, v{row}
        v_sub_u32 v{e}, v{e}, v{pT+2}
        v_mul_u32_u24 v{row}, s3, v{row}
        v_lshl_add_u32 v{vX0+p_}, v{e}, 4, v{row}
        """)
        if p_:
            a(f"v_subrev_u32 v{vX0+p_}, {1024*p_}, v{vX0+p_}")
    lanecalc(a, vTA, l, [(2, 4, 96), (0, 2, 8)], add=f"s{sG}", tmp=pT)
    a(cfg.st("pro_end"))
    a("s_waitcnt lgkmcnt(0)")


def gen_epilogue(a, name, cfg):
    l = vX4
    vDB = 248
    tV, tK = 252, 253
    STG = 128
    NST = 6
    ACC = [192, 128, 152, 176]
    ACB = [128, 160]
    CV = [216, 220, 224, 228]
    a("s_waitcnt lgkmcnt(0)\ns_barrier")
    B = Builder(cfg, 96, list(range(8)))
    st = B.st
    LAG = cfg.ELAG

    def own(qb, ks): return r4('v', O(qb, 2 * ks))

    def bfrag(j, qb, ks):
        if j == 0:
            return own(qb, ks)
        if j == 1:
            return r4('v', O(qb, 2 * ks) + 4)
        return r4('a', 128 + (((j - 2) * 2 + qb) * 8 + ks) * 4)

    def wb_dma(ks):
        g = []
        sb, off = (sXV, [0, 4096, XV1, XV1 + 4096][ks]) if ks < 4 else (sXK, 4096 * (ks - 4))
        for q in range(4):
            t = []
            if q == 0:
                t.append(f"s_add_u32 m0, s{sb}, {off}\ns_nop 0")
            t.append(f"buffer_load_dwordx4 v{vDB+q}, s[{SRD_WO}:{SRD_WO+3}], s{sWB} offen offset:{1024*q} lds" + (f" ;@U{ks}" if q == 3 else ""))
            if q == 3:
                t.append(f"s_add_u32 s{sWB}, s{sWB}, {32*896}")
            g.append("\n".join(t))
        return g

    cvn = [0]

    def post(acc0, acc1, sreg, off):
        c = CV[cvn[0] % 4]
        cvn[0] += 1
        return [(f"v_cvt_pk_bf16_f32 v{c}, v{acc0}, v{acc0+1}", 1, 0),
                (f"v_cvt_pk_bf16_f32 v{c+1}, v{acc0+2}, v{acc0+3}", 1, 0),
                (f"v_cvt_pk_bf16_f32 v{c+2}, v{acc1}, v{acc1+1}", 1, 0),
                (f"v_cvt_pk_bf16_f32 v{c+3}, v{acc1+2}, v{acc1+3}", 1, 0),
                (f"buffer_store_dwordx4 v[{c}:{c+3}], v{vL16}, s[{SRD_WS}:{SRD_WS+3}], s{sreg} offen offset:{off}{cfg.stmod}", 1, 0)]

    units = [(ks, qb) for ks in (4, 5, 0, 1, 2, 3, 6, 7) for qb in range(2)]
    uidx = {k: i for i, k in enumerate(units)}

    def T(u): return 3 * (u - LAG)

    def sub(u, k): return T(u) + 0.01 + 2.9 * k / 40.0

    for i in range(8):
        db, q = 12 + i // 2, i % 2
        B.add(sub(i // 2 - 1, 30 + 4 * (i % 2)), f"ds_write_b128 v{eVw}, {r4('a', O(2+q, db))} offset:{XV1 + (2*(db-12)+q)*1024}", "ds", ("xw", db, q))
    x = Asm()
    x(f"""
    v_lshrrev_b32 v{tV}, 3, v{l}
    s_movk_i32 s3, 896
    v_mul_u32_u24 v{vDB}, s3, v{tV}
    v_lshrrev_b32 v{tV}, 1, v{tV}
    v_bfe_u32 v{tK}, v{l}, 1, 2
    v_xor_b32 v{tV}, v{tV}, v{tK}
    v_lshl_add_u32 v{vDB}, v{tV}, 5, v{vDB}
    v_and_b32 v{tK}, 1, v{l}
    v_lshl_add_u32 v{vDB}, v{tK}, 4, v{vDB}
    v_add_u32 v{vDB+1}, {6144}, v{vDB}
    v_add_u32 v{vDB+2}, {2*6144}, v{vDB}
    v_add_u32 v{vDB+3}, {3*6144}, v{vDB}
    """)
    lanecalc(x, tV, l, [(2, 3, 128), (5, 1, 1024), (0, 2, 8), (3, 2, 32)], tmp=tK)
    x(f"v_add_u32 v{tK}, s{sXK}, v{tV}\nv_add_u32 v{tV}, s{sXV}, v{tV}")
    B.add(sub(-1, 20), "\n".join(i.text for i in x.items))
    for u, (ks, qb) in enumerate(units):
        sg = STG + 8 * (u % NST)
        ur = u - (NST - 1)
        for h in range(2):
            db = 2 * ks + h
            if db < 8:
                va, off = eK, (2 * db + qb) * 1024
            elif db < 12:
                va, off = eVr, (2 * (db - 8) + qb) * 1024
            else:
                va, off = eVr, XV1 + (2 * (db - 12) + qb) * 1024
            pos = sub(ur, 1 + h) if ur >= 0 else sub(-1, 2 * u + h)
            B.add(pos, f"ds_read_b128 {r4('v', sg+4*h)}, v{va} offset:{off}", "ds", ("p", u, h))
        r = O(qb, 2 * ks)
        k = 4
        for i in range(8):
            B.add(sub(u, k), f"v_mul_f32 v{r+i}, v{eFA+qb}, v{r+i}")
            k += 1
        for i in range(8):
            B.add(sub(u, k), f"v_fma_f32 v{r+i}, v{eFB+qb}, v{sg+i}, v{r+i}", "need" if i == 0 else "x", [("p", u, 1)])
            k += 1
        for i in range(4):
            B.add(sub(u, k), f"v_cvt_pk_bf16_f32 v{r+i}, v{r+2*i}, v{r+2*i+1}")
            k += 1
        uw = max(u, uidx[(ks // 2, qb)])
        B.add(sub(uw, 26 + (1 if uw != u else 0)), f"ds_write_b128 v{eK}, {own(qb, ks)} offset:{(2*ks+qb)*1024}", "ds", ("fw", u))
        for cb in range(3):
            d = r4('v', ACC[0] + (cb * 2 + qb) * 4)
            st.mfma(f"{MF} {d}, {r4('a', AF(ks, cb))}, {own(qb, ks)}, {d if u >= 2 else '0'}")
    B.add(sub(12 - (NST - 1), 0), "s_barrier", "need", [("xw", 15, 1)])
    for i, g in enumerate(wb_dma(0) + wb_dma(1)):
        B.add(sub(4 + i, 28), g)
    for i, g in enumerate(wb_dma(2) + wb_dma(3)):
        B.add(sub(15, 30 + i), g)
    p3 = sub(15, 39)
    B.add(p3, cfg.st("e_b3") + "\ns_waitcnt lgkmcnt(0)\ns_barrier", "waitall")
    rd = []
    for j in range(1, 4):
        for ks in range(8):
            for qb in range(2):
                rd.append((f"ds_read_b128 {bfrag(j, qb, ks)}, v{eK+j} offset:{(2*ks+qb)*1024}", ("b", j, qb, ks)))
    for i, (txt, fid) in enumerate(rd):
        B.add(p3 + 0.01 + (i * 0.001 if i < 8 else (i - 7) * cfg.ERD), txt, "ds", fid)
    p4 = math.ceil(p3 + 41 * cfg.ERD + 4)
    for j in range(1, 4):
        base = st.pos()
        B.deferred.append((sum([post(ACC[j-1] + cb * 8, ACC[j-1] + cb * 8 + 4, sPA + j - 1, 1024 * cb) for cb in range(3)], []), base + 4, base + 40))
        for ks in range(8):
            for qb in range(2):
                for cb in range(3):
                    d = r4('v', ACC[j] + (cb * 2 + qb) * 4)
                    st.mfma(f"{MF} {d}, {r4('a', AF(ks, cb))}, {bfrag(j, qb, ks)}, {d if ks else '0'}", (("b", j, qb, ks),) if cb == 0 else ())
    B.add(p4 - 0.2, "s_barrier", "need", [("b", 3, 1, 7)], u=2)
    g = sum([wb_dma(k) for k in range(4, 8)], [])
    for i, txt in enumerate(g):
        B.add(p4 + 1 + 2 * i - 0.3, txt, u=txt.count("\n") + 1)
    if cfg.l2pf:
        B.add(p4 + 36.5, f"""
        s_lshr_b32 s3, s2, 3
        s_lshl_b32 s3, s3, 2
        s_add_u32 s3, s3, s{sWv}
        s_mul_i32 s{sTmp}, s3, 12544
        v_lshlrev_b32 v{vL}, 7, v{l}
        buffer_load_dword v{vL+1}, v{vL}, s[{SRD_W}:{SRD_W+3}], s{sTmp} offen
        s_add_u32 s{sTmp}, s{sTmp}, 4352
        """)
        B.add(p4 + 40.5, f"""
        buffer_load_dword v{vL+2}, v{vL}, s[{SRD_W}:{SRD_W+3}], s{sTmp} offen
        s_mul_i32 s3, s3, 7168
        s_and_b32 s{sTmp}, s2, 7
        s_mul_i32 s{sTmp}, s{sTmp}, {4*HWS_RG}
        s_add_u32 s3, s3, s{sTmp}
        """)
        B.add(p4 + 44.5, f"buffer_load_dword v{vL+3}, v{vL}, s[{SRD_WS}:{SRD_WS+3}], s3 offen")
    assert p4 + 40 < st.pos()
    prev = sum([post(ACC[3] + cb * 8, ACC[3] + cb * 8 + 4, sPA + 3, 1024 * cb) for cb in range(3)], [])
    B.minread = st.pos() - 24
    B.add(B.minread - 0.3, "s_waitcnt vmcnt(@U3)")
    for cb in range(4):
        base = st.pos()
        acc = ACB[cb % 2]
        B.deferred.append((prev, base + 4, base + 60))

        def rds(ks):
            va, off = (tV, [0, 4096, XV1, XV1 + 4096][ks]) if ks < 4 else (tK, 4096 * (ks - 4))
            return [lambda fr: f"ds_read_b64_tr_b16 a[{fr}:{fr+1}], v{va} offset:{off}",
                    lambda fr: f"ds_read_b64_tr_b16 a[{fr+2}:{fr+3}], v{va} offset:{off+2048}"]

        def mm(j, qb, ks):
            d = r4('v', acc + (j * 2 + qb) * 4)
            return lambda fr: f"{MF} {d}, {r4('a', fr)}, {bfrag(j, qb, ks)}, {d if ks else '0'}"
        if cb < 3:
            for ks in range(8):
                if cb == 0 and ks == 4:
                    B.minread = st.pos() - 24
                    B.add(B.minread - 0.3, "s_waitcnt vmcnt(@U7)")
                B.frag(ks, rds(ks), [mm(j, qb, ks) for j in range(4) for qb in range(2)], pair=False, lead=24)
                if ks in (3, 7):
                    r = tV if ks == 3 else tK
                    B.add(B.lastread + 0.1, f"v_xor_b32 v{r}, {32 * (cb ^ (cb + 1))}, v{r}")
            prev = sum([post(acc + j * 8, acc + j * 8 + 4, sPB + j, 1024 * cb) for j in range(4)], [])
        else:
            for j in range(4):
                for ks in range(8):
                    ms = [mm(j, qb, ks) for qb in range(2)]
                    if j == 0:
                        B.frag(ks, rds(ks), ms, pair=False, lead=24)
                    else:
                        for m in ms:
                            st.mfma(m(96 + 4 * ks))
                B.deferred.append((post(acc + j * 8, acc + j * 8 + 4, sPB + j, 1024 * cb), st.pos() + 4, st.pos() + 15))
    B.finish(a)


def gen_ka(name="ka_kernel", stampk=None, cfg=None):
    cfg = cfg or Cfg()
    cfg.stamps = stampk is not None
    a = Asm()
    gen_setup(a, name, cfg)
    gen_prologue(a, name, cfg)
    gen_attn(a, name, cfg)
    a(cfg.st("attn_end"))
    gen_epilogue(a, name, cfg)
    if cfg.stamps:
        stamp_end(a, stampk, 128, sWv)
    a(f"s_endpgm")
    gen_slow(a, name)
    a(f"{name}_end:\ns_endpgm")
    p = resolve_vm(a).padded()
    items = p.items
    i0 = items.index(f"{name}_loop:")
    i1 = max(i for i, it in enumerate(items) if not isinstance(it, str) and it.text.endswith(f"{name}_loop"))
    sp = seam_pad(items[i0:i1 + 1])
    assert sp <= 0, sp
    return kernel_header(name) + p.text(), kernel_desc(name, 512, 256)


if __name__ == "__main__":
    t, d = gen_ka()
    open("ka.txt", "w").write(t)
```

```python
from asmlib import *
from ka3 import HWS_RG, PART

KB_LDS = 131072
KB_GRID = 224
MF = "v_mfma_f32_16x16x32_bf16"


def gen_kb(name="kb_kernel", stamp=None, depth=4, pspan=14, ldmod="", nop=False, noh=False, now=False, pmod="", norot=False):
    a = Asm()
    VY = 0
    VP = 64
    VA = 192
    vXd = 224
    vSel = 232
    vD = 238
    vT = 242
    vL16, vX = 246, 247
    vt0, vt1, vt2, vl = 248, 249, 250, 251
    aS = 224
    sW, sA, sAend, sWb, sCG, sWv, sP, sA0, sW0 = 30, 31, 32, 33, 34, 35, 36, 37, 38
    SRD_W, SRD_A, SRD_X, SRD_O, SRD_P = 20, 24, 40, 44, 48

    a(f"""
    s_cmp_ge_u32 s2, {KB_GRID}
    s_cbranch_scc1 {name}_end
    {"s_memrealtime s[64:65]" if stamp is not None else ""}
    s_load_dwordx2 s[4:5], s[0:1], 0
    s_load_dwordx4 s[8:11], s[0:1], 64
    s_load_dwordx2 s[12:13], s[0:1], 88
    v_lshrrev_b32 v{vt0}, 6, v0
    v_and_b32 v{vl}, 63, v0
    s_and_b32 s14, s2, 7
    v_readfirstlane_b32 s{sWv}, v{vt0}
    s_lshr_b32 s15, s2, 3
    s_mul_i32 s16, s15, 37
    s_lshr_b32 s16, s16, 8
    s_mul_i32 s17, s16, 7
    s_sub_u32 s{sCG}, s15, s17
    s_lshl_b32 s14, s14, 2
    s_add_u32 s14, s14, s16
    v_lshlrev_b32 v{vL16}, 4, v{vl}
    s_movk_i32 s16, 896
    """)
    a(f"""
    v_lshrrev_b32 v{vt0}, 3, v{vl}
    v_mul_u32_u24 v{vt1}, s16, v{vt0}
    v_lshrrev_b32 v{vt0}, 1, v{vt0}
    v_bfe_u32 v{vt2}, v{vl}, 1, 2
    v_xor_b32 v{vt0}, v{vt0}, v{vt2}
    v_lshlrev_b32 v{vt0}, 5, v{vt0}
    v_and_b32 v{vt2}, 1, v{vl}
    v_lshlrev_b32 v{vt2}, 4, v{vt2}
    v_add3_u32 v{vD}, v{vt0}, v{vt1}, v{vt2}
    v_add_u32 v{vD+1}, {6144}, v{vD}
    v_add_u32 v{vD+2}, {2*6144}, v{vD}
    v_add_u32 v{vD+3}, {3*6144}, v{vD}
    s_lshl_b32 s{sWb}, s{sWv}, 15
    s_mul_i32 s15, s{sWv}, 14
    s_mul_i32 s{sA0}, s14, {HWS_RG}
    s_lshl_b32 s17, s15, 12
    s_add_u32 s{sA0}, s{sA0}, s17
    s_add_u32 s{sAend}, s{sA0}, {14*4096}
    s_mul_i32 s{sW0}, s15, {32*896}
    s_lshl_b32 s17, s{sCG}, 7
    s_add_u32 s{sW0}, s{sW0}, s17
    s_lshl_b32 s17, s{sCG}, 13
    s_add_u32 s{sA}, s{sA0}, s17
    s_mul_i32 s17, s{sCG}, {2*32*896}
    s_add_u32 s{sW}, s{sW0}, s17
    {f"s_mov_b32 s{sA}, s{sA0}" if norot else ""}
    {f"s_mov_b32 s{sW}, s{sW0}" if norot else ""}
    s_waitcnt lgkmcnt(0)
    s_mov_b32 s{SRD_A}, s12
    s_mov_b32 s{SRD_A+1}, s13
    s_mov_b32 s{SRD_A+2}, {0 if noh else 64 << 20}
    s_mov_b32 s{SRD_A+3}, 0x00020000
    s_mov_b32 s{SRD_P}, s12
    s_mov_b32 s{SRD_P+1}, s13
    s_mov_b32 s{SRD_P+2}, {0 if nop else 64 << 20}
    s_mov_b32 s{SRD_P+3}, 0x00020000
    s_mov_b32 s{SRD_W}, s8
    s_mov_b32 s{SRD_W+1}, s9
    s_mov_b32 s{SRD_W+2}, {0 if now else 1792*896}
    s_mov_b32 s{SRD_W+3}, 0x00020000
    """)

    def group(i):
        g = [f"s_add_u32 m0, s{sWb}, {4096*(i%8)}"]
        for rb in range(4):
            r = 16 * i + 4 * rb
            g.append(f"buffer_load_dwordx4 a[{r}:{r+3}], v{vL16}, s[{SRD_A}:{SRD_A+3}], s{sA} offen offset:{1024*rb}{ldmod}")
        for q in range(4):
            g.append(f"buffer_load_dwordx4 v{vD+q}, s[{SRD_W}:{SRD_W+3}], s{sW} offen offset:{1024*q} lds" + (f" ;@G{i}" if q == 3 else ""))
        g.append(f"s_add_u32 s{sA}, s{sA}, 4096\ns_add_u32 s{sW}, s{sW}, {32*896}\ns_cmp_eq_u32 s{sA}, s{sAend}\n"
                 f"s_cselect_b32 s{sA}, s{sA0}, s{sA}\ns_cselect_b32 s{sW}, s{sW0}, s{sW}")
        return g

    def pload(k):
        r = VP + 4 * k
        return f"buffer_load_dwordx4 v[{r}:{r+3}], v{vL16}, s[{SRD_P}:{SRD_P+3}], s{sP} offen{pmod} ;@P{k}\ns_add_u32 s{sP}, s{sP}, {28*1024}"

    pl = [[] for _ in range(14)]
    for k in range(32):
        pl[k * pspan // 32].append(k)
    a(f"""
    s_lshl_b32 s15, s{sCG}, 2
    s_add_u32 s15, s15, s{sWv}
    s_lshl_b32 s15, s15, 10
    s_mul_i32 s{sP}, s14, {32*28*1024}
    s_add_u32 s{sP}, s{sP}, s15
    s_add_u32 s{sP}, s{sP}, {PART}
    """)

    def fullgroup(i):
        return [pload(k) for k in pl[i]] + group(i)

    for i in range(depth):
        for t in fullgroup(i):
            a(t)
    a(f"""
    s_mov_b32 s{SRD_X}, s4
    s_mov_b32 s{SRD_X+1}, s5
    s_mov_b32 s{SRD_X+2}, {2048*896}
    s_mov_b32 s{SRD_X+3}, 0x00020000
    s_mov_b32 s{SRD_O}, s10
    s_mov_b32 s{SRD_O+1}, s11
    s_mov_b32 s{SRD_O+2}, {2048*896}
    s_mov_b32 s{SRD_O+3}, 0x00020000
    v_and_b32 v{vt0}, 15, v{vl}
    s_lshl_b32 s15, s14, 6
    v_add_u32 v{vt0}, s15, v{vt0}
    v_mul_lo_u32 v{vt0}, v{vt0}, s16
    v_lshrrev_b32 v{vt1}, 4, v{vl}
    v_lshlrev_b32 v{vt1}, 3, v{vt1}
    s_lshl_b32 s15, s{sCG}, 2
    s_add_u32 s15, s15, s{sWv}
    s_lshl_b32 s17, s15, 5
    v_add3_u32 v{vX}, v{vt0}, v{vt1}, s17
    s_movk_i32 s18, {16*896}
    s_movk_i32 s19, {32*896}
    s_mov_b32 s28, {48*896}
    """)
    xso = ["0", "s18", "s19", "s28"]
    xl = [f"buffer_load_dwordx2 v[{vXd+2*rb}:{vXd+2*rb+1}], v{vX}, s[{SRD_X}:{SRD_X+3}], {xso[rb]} offen" + (" ;@X" if rb == 3 else "") for rb in range(4)]
    a(f"""
    v_bfe_u32 v{vt0}, v{vl}, 2, 3
    v_lshlrev_b32 v{vt1}, 7, v{vt0}
    v_lshrrev_b32 v{vt2}, 5, v{vl}
    v_lshlrev_b32 v{vt2}, 10, v{vt2}
    v_add3_u32 v{vt1}, v{vt1}, v{vt2}, s{sWb}
    v_and_b32 v{vt2}, 3, v{vl}
    v_lshlrev_b32 v{vt2}, 3, v{vt2}
    v_add_u32 v{vt1}, v{vt1}, v{vt2}
    v_lshrrev_b32 v{vt0}, 1, v{vt0}
    v_xor_b32 v{vt0}, s{sWv}, v{vt0}
    v_lshl_add_u32 v{vT}, v{vt0}, 5, v{vt1}
    v_xor_b32 v{vT+1}, 32, v{vT}
    v_xor_b32 v{vT+2}, 64, v{vT}
    v_xor_b32 v{vT+3}, 96, v{vT}
    """)
    a(f"""
    v_lshrrev_b32 v{vt0}, 4, v{vl}
    v_bfe_u32 v{vt1}, v{vl}, 2, 2
    v_cmp_eq_u32 vcc, v{vt0}, v{vt1}
    v_and_b32 v{vt0}, 1, v{vl}
    v_lshlrev_b32 v{vt0}, 4, v{vt0}
    v_mov_b32 v{vt1}, 0x3f80
    v_lshlrev_b32 v{vt0}, v{vt0}, v{vt1}
    v_cndmask_b32 v{vt0}, 0, v{vt0}, vcc
    v_and_b32 v{vt1}, 2, v{vl}
    v_cmp_eq_u32 vcc, 0, v{vt1}
    v_mov_b32 v{vSel}, 0
    v_mov_b32 v{vSel+1}, 0
    v_cndmask_b32 v{vSel+2}, 0, v{vt0}, vcc
    v_cndmask_b32 v{vSel+3}, v{vt0}, 0, vcc
    v_mov_b32 v{vSel+4}, 0
    v_mov_b32 v{vSel+5}, 0
    """)

    def trd(i):
        return [f"ds_read_b64_tr_b16 v[{VA+16*(i%2)+4*cb+2*hf}:{VA+16*(i%2)+4*cb+2*hf+1}], v{vT+cb} offset:{4096*(i%8)+2048*hf}"
                for cb in range(4) for hf in range(2)]

    a("s_waitcnt vmcnt(@G0)")
    for t in trd(0):
        a(t)
    for i in range(14):
        fill = []
        if i < 13:
            a(f"s_waitcnt vmcnt(@G{i+1}) lgkmcnt(0)")
            fill += trd(i + 1)
        else:
            a("s_waitcnt lgkmcnt(0)")
        n = i + depth
        if n < 14:
            fill += fullgroup(n)
        if n == 14:
            fill += xl
        mf = []
        for rb in range(4):
            for cb in range(4):
                d = VY + 16 * rb + 4 * cb
                ra = VA + 16 * (i % 2) + 4 * cb
                rbb = 16 * i + 4 * rb
                mf.append(f"{MF} v[{d}:{d+3}], v[{ra}:{ra+3}], a[{rbb}:{rbb+3}], " + (f"v[{d}:{d+3}]" if i else "0"))
        pm = []
        for k in pl[i]:
            r = VP + 4 * k
            for h in range(2):
                d = aS + 4 * (2 * (k // 16) + h)
                sel = vSel + 2 - 2 * h
                pm.append(f"{MF} a[{d}:{d+3}], v[{sel}:{sel+3}], v[{r}:{r+3}], " + (f"a[{d}:{d+3}]" if k % 16 else "0"))
        mf = pm + mf
        k = 0
        for m in mf:
            a(m)
            if k < len(fill):
                a(fill[k])
                k += 1
        while k < len(fill):
            a(fill[k])
            k += 1
    if stamp is not None:
        a("s_memrealtime s[66:67]")
    for c in range(1, 4):
        a(f"s_xor_b32 s15, s{sWv}, {c}\ns_lshl_b32 s15, s15, 15\nv_add_u32 v{vD+c}, s15, v{vL16}")
    a(f"v_add_u32 v{vt0}, s{sWb}, v{vL16}")
    for c in range(1, 4):
        for rb in range(4):
            r = VY + 16 * rb + 4 * c
            a(f"ds_write_b128 v{vt0}, v[{r}:{r+3}] offset:{4096*c + 1024*rb}")
    S = VP
    X = VP + 16
    a("s_mov_b32 s16, 0xbfb8aa3b")
    a("s_mov_b32 s17, 0xffff0000")
    for i in range(16):
        a(f"v_accvgpr_read_b32 v{S+i}, a{aS+i}")
    a("s_waitcnt vmcnt(@X)")
    for i in range(8):
        a(f"v_lshlrev_b32 v{X+2*i}, 16, v{vXd+i}")
        a(f"v_and_b32 v{X+2*i+1}, s17, v{vXd+i}")
    a(f"""
    s_waitcnt lgkmcnt(0)
    s_barrier
    """)
    for rb in range(4):
        for c in range(1, 4):
            r = VY + 16 * rb + 4 * c
            a(f"ds_read_b128 v[{r}:{r+3}], v{vD+c} offset:{4096*c + 1024*rb}")
    for rb in range(4):
        a(f"s_waitcnt lgkmcnt({9-3*rb})")
        Y = VY + 16 * rb
        T = Y + 4
        for h in range(2):
            a(f"v_pk_add_f32 v[{Y+2*h}:{Y+2*h+1}], v[{Y+2*h}:{Y+2*h+1}], v[{Y+4+2*h}:{Y+5+2*h}]")
            a(f"v_pk_add_f32 v[{Y+8+2*h}:{Y+9+2*h}], v[{Y+8+2*h}:{Y+9+2*h}], v[{Y+12+2*h}:{Y+13+2*h}]")
        for h in range(2):
            a(f"v_pk_add_f32 v[{Y+2*h}:{Y+2*h+1}], v[{Y+2*h}:{Y+2*h+1}], v[{Y+8+2*h}:{Y+9+2*h}]")
        for r in range(4):
            a(f"v_mul_f32 v{T+r}, s16, v{Y+r}")
        for r in range(4):
            a(f"v_exp_f32 v{T+r}, v{T+r}")
        for h in range(2):
            a(f"v_pk_mul_f32 v[{Y+2*h}:{Y+2*h+1}], v[{Y+2*h}:{Y+2*h+1}], v[{S+4*rb+2*h}:{S+4*rb+2*h+1}]")
        for r in range(4):
            a(f"v_add_f32 v{T+r}, 1.0, v{T+r}")
        for r in range(4):
            a(f"v_rcp_f32 v{T+r}, v{T+r}")
        for r in range(4):
            a(f"v_fma_f32 v{Y+r}, v{Y+r}, v{T+r}, v{X+4*rb+r}")
        for q in range(2):
            a(f"v_cvt_pk_bf16_f32 v{T+4+q}, v{Y+2*q}, v{Y+2*q+1}")
        a(f"buffer_store_dwordx2 v[{T+4}:{T+5}], v{vX}, s[{SRD_O}:{SRD_O+3}], {xso[rb]} offen")
    if stamp is not None:
        a("s_memrealtime s[68:69]")
    if stamp is not None:
        stamp_end(a, stamp, 160, sWv)
    a(f"""
    {name}_end:
    s_endpgm
    """)
    p = resolve_vm(a).padded()
    return kernel_header(name) + p.text(), kernel_desc(name, 512, 256)


if __name__ == "__main__":
    t, d = gen_kb()
    print(t)
```

```python
from asmlib import *


class Stream:
    def __init__(self):
        self.mf = []
        self.fill = []
        self.seq = 0
        self.nsat = 0
        self.seen = set()

    def pos(self):
        return len(self.mf)

    def mfma(self, text, need=()):
        self.mf.append((text, tuple(need)))

    def add(self, pos, text, kind="x", fid=None):
        self.fill.append((pos, self.seq, text, kind, fid))
        self.seq += 1

    def emit(self, a, state=None):
        out = list(state or [])
        fills = sorted(self.fill, key=lambda f: (f[0], f[1]))
        k = 0
        cuts = {}

        def do_fill(f):
            nonlocal out
            pos, _, text, kind, fid = f
            if kind == "cut":
                cuts[text] = (len(a.items), list(out))
                return
            if kind == "ds":
                self.seen.add(fid)
                if len(out) == 15:
                    a("s_waitcnt lgkmcnt(9)")
                    out = out[6:]
                    self.nsat += 1
                out.append(fid)
            if kind == "waitall":
                out = []
            if kind == "need":
                for f_ in fid:
                    if f_ not in self.seen:
                        print("WARNING: need before issue", f_, text[:40])
                wait(fid)
            a(text)

        def wait(need):
            nonlocal out
            idx = [i for i, f in enumerate(out) if f in need]
            if idx:
                n = len(out) - 1 - max(idx)
                a(f"s_waitcnt lgkmcnt({n})")
                out = out[max(idx) + 1:]

        for i, (text, need) in enumerate(self.mf):
            while k < len(fills) and fills[k][0] <= i:
                do_fill(fills[k])
                k += 1
            if need and need[0] not in self.seen:
                print("WARNING: mfma need before issue", need[0], text)
            wait(need)
            a(text)
        while k < len(fills):
            do_fill(fills[k])
            k += 1
        return cuts, out
```

```python
import sys, importlib
sys.path.insert(0, "gen")
from asmlib import *

HEADER = open("recurrent_scan__gqa_block_cached__glu_gated_geglu__prompt.s.ref").read().split("; Override launch geometry")[0]

def assemble(kernels, path):
    s = HEADER
    for name, grid, lds, text, desc in kernels:
        s += f"; @launch kernel={name} grid=({grid},1,1) block=(256,1,1) lds={lds}\n"
    s += '.amdgcn_target "amdgcn-amd-amdhsa--gfx950"\n.text\n'
    seen = set()
    for name, grid, lds, text, desc in kernels:
        if name in seen: continue
        seen.add(name)
        s += text
    s += '.section .rodata,"a"\n'
    seen = set()
    for name, grid, lds, text, desc in kernels:
        if name in seen: continue
        seen.add(name)
        s += desc
    open(path, "w").write(s)

if __name__ == "__main__":
    what = sys.argv[1]
    out = sys.argv[2]
    import kb
    ks = []
    if what == "kb":
        t, d = kb.gen_kb(stamp=1)
        ks.append(("kb_kernel", kb.KB_GRID, kb.KB_LDS, t, d))
    if what in ("attn", "attn_kb"):
        import ka
        t, d = ka.gen_ka(stampk=0)
        ks.append(("ka_kernel", ka.KA_GRID, ka.KA_LDS_TOTAL, t, d))
        if what == "attn_kb":
            t, d = kb.gen_kb(stamp=1)
            ks.append(("kb_kernel", kb.KB_GRID, kb.KB_LDS, t, d))
    if what in ("full", "final"):
        import ka2
        st = what == "full"
        t, d = ka2.gen_ka(stampk=0 if st else None)
        ks.append(("ka_kernel", ka2.KA_GRID, ka2.KA_LDS, t, d))
        t, d = kb.gen_kb(stamp=1 if st else None)
        ks.append(("kb_kernel", kb.KB_GRID, kb.KB_LDS, t, d))
    if what in ("full3", "final3"):
        import ka3, kb2
        st = what == "full3"
        cfg = ka3.Cfg()
        kbk = {}
        kw = eval("dict(" + sys.argv[3] + ")") if len(sys.argv) > 3 else {}
        for k, v in kw.items():
            if k.startswith("kb_"):
                kbk[k[3:]] = v
            else:
                setattr(cfg, k, v)
        t, d = ka3.gen_ka(stampk=0 if st else None, cfg=cfg)
        ks.append(("ka_kernel", ka3.KA_GRID, ka3.KA_LDS, t, d))
        t, d = kb2.gen_kb(stamp=1 if st else None, **kbk)
        ks.append(("kb_kernel", kb2.KB_GRID, kb2.KB_LDS, t, d))
    assemble(ks, out)
```
